```python
import torch

def _softmax(x, axis=-1):
    return torch.softmax(x, dim=axis)
def _gelu(x):
    return torch.nn.functional.gelu(x, approximate="tanh")
def _silu(x):
    return torch.nn.functional.silu(x)
def _sigmoid(x):
    return torch.sigmoid(x)
def _layernorm(x, axis=-1, eps=1e-5):
    m = x.mean(dim=axis, keepdim=True)
    v = x.var(dim=axis, keepdim=True, unbiased=False)
    return (x - m) / torch.sqrt(v + eps)
def _scatter_add(tgt, idx, src, axis=0):
    return tgt.clone().index_add_(axis, idx, src)
def _segment_sum(src, seg, n):
    out = torch.zeros((n,) + src.shape[1:], dtype=src.dtype)
    return out.index_add_(0, seg, src)
def _pad(x, pw):
    flat = tuple(v for pair in reversed(pw) for v in pair)
    return torch.nn.functional.pad(x, flat)

kernel_name = 'standalone__gqa_softmax__decode'

def setup_inputs():

    _w = (lambda a: (lambda t: t.to(torch.bfloat16) if t.is_floating_point() else t)(torch.as_tensor(a)))
    B, Hq, Hkv, Sq, Sk, D = 2, 32, 16, 1, 8192, 128
    return {
        "q": _w((lambda *s: torch.randn(*s, dtype=torch.bfloat16) * 0.8)(B, Hq, Sq, D)),
        "k": _w((lambda *s: torch.randn(*s, dtype=torch.bfloat16) * 0.8)(B, Hkv, Sk, D)),
        "v": _w((lambda *s: torch.randn(*s, dtype=torch.bfloat16) * 0.05)(B, Hkv, Sk, D)),
    }

def reference(q, k, v):
    B, Hq, Sq, D = q.shape
    Hkv = k.shape[1]
    rep = Hq // Hkv
    k = (lambda x, n, axis: torch.repeat_interleave(x, n, dim=axis))(k, rep, axis=1)
    v = (lambda x, n, axis: torch.repeat_interleave(x, n, dim=axis))(v, rep, axis=1)
    scale = D ** -0.5
    scores = torch.einsum("bhqd,bhkd->bhqk", q, k) * scale
    p = _softmax(scores, axis=-1)
    return torch.einsum("bhqk,bhkd->bhqd", p, v)
```

```python
import sys, math, argparse

NAME = "standalone__gqa_softmax__decode"
HDR = """; Kernarg layout for this problem (48 bytes, ptrs only, base s[0:1]):
"""

import struct
def f32bits(x):
    return struct.unpack("<I", struct.pack("<f", x))[0]

SCALE = f32bits(math.log2(math.e) / math.sqrt(128.0))

class Asm:
    def __init__(self):
        self.l = []
    def __call__(self, s):
        self.l.append("    " + s)
    def label(self, s):
        self.l.append(s + ":")
    def raw(self, s):
        self.l.append(s)
    def text(self):
        return "\n".join(self.l) + "\n"

def desc(name, vgpr, sgpr, accum):
    return f""".section .rodata,"a"
.p2align 6
.amdhsa_kernel {name}
  .amdhsa_next_free_vgpr {vgpr}
  .amdhsa_next_free_sgpr {sgpr}
  .amdhsa_accum_offset {accum}
  .amdhsa_group_segment_fixed_size 0
  .amdhsa_kernarg_size 48
  .amdhsa_user_sgpr_count 2
  .amdhsa_user_sgpr_kernarg_segment_ptr 1
  .amdhsa_system_sgpr_workgroup_id_x 1
.end_amdhsa_kernel
"""

def gen(NW=16, mode="two", kflag="", vflag="", xcd=True, stamps=False, spin=None, reps=1, creps=1):
    NSPLIT = 8
    NWG = 32 * NSPLIT
    CH = 262144 // NW
    NL = CH // 1024
    NB = (NL + 7) // 8
    use_acc = (NW == 4)
    OFF_M = NW * 1024
    OFF_L = OFF_M + 2 * NW * 4
    LDS = OFF_L + 2 * NW * 4
    main = NAME + "_kernel"
    comb = "combine_kernel"
    a = Asm()
    r = 1
    def alloc(n, align=1):
        nonlocal r
        r = (r + align - 1) // align * align
        b = r
        r += n
        return b
    vL = alloc(1); vW = alloc(1); vT = alloc(1); vC = alloc(1)
    vM = alloc(1); vLs = alloc(1); vX = alloc(1); vY = alloc(1)
    vKo = alloc(NB); vVo = alloc(NB)
    vQ = alloc(4, 4); vMask = alloc(4, 4); vPd = alloc(4, 4); vO = alloc(4, 4)
    vD = alloc(16, 4)
    vS = alloc(NL, 4)
    if use_acc:
        nv = r
        accum = (nv + 3) // 4 * 4
        def dat(t): return f"a[{4*t}:{4*t+3}]"
        total = accum + 4 * NL
    else:
        vDat = alloc(4 * NL, 4)
        nv = r
        accum = (nv + 3) // 4 * 4
        def dat(t): return f"v[{vDat+4*t}:{vDat+4*t+3}]"
        total = nv
    limit = {16: 128, 8: 256, 4: 512}[NW]
    assert total <= limit, (total, limit)
    total_decl = limit
    if not use_acc:
        accum = min(256, total_decl)
    def v4(b): return f"v[{b}:{b+3}]"

    hdr = HDR
    if mode == "two":
        hdr += f"; @launch kernel={main} grid=({NWG},1,1) block=({NW*64},1,1) lds={LDS}\n" * reps
        hdr += f"; @launch kernel={comb} grid=(32,1,1) block=(64,1,1) lds=0\n" * creps
        if spin is not None:
            hdr += f"; @launch kernel=spin_kernel grid=(1,1,1) block=(64,1,1) lds=0\n"
    else:
        hdr += f"; @launch grid=({NWG},1,1) block=({NW*64},1,1) lds={LDS}\n"
    a.raw(hdr + '.amdgcn_target "amdgcn-amd-amdhsa--gfx950"\n.text')
    a.raw(f".globl {main}\n.p2align 8\n.type {main},@function")
    a.label(main)
    a("s_load_dwordx8 s[4:11], s[0:1], 0")
    a("s_load_dwordx4 s[12:15], s[0:1], 32")
    def stamp(i):
        if stamps:
            a(f"s_memrealtime s[{40+2*i}:{41+2*i}]")
            a("s_waitcnt lgkmcnt(0)")
    if stamps:
        a("s_memrealtime s[40:41]")
    a(f"s_cmp_ge_u32 s2, {NWG}")
    a("s_cbranch_scc1 L_end")
    if xcd:
        a("s_and_b32 s16, s2, 7")
        a("s_lshl_b32 s16, s16, 2")
        a("s_bfe_u32 s17, s2, 0x20003")
        a("s_or_b32 s16, s16, s17")
        a("s_lshr_b32 s17, s2, 5")
    else:
        a("s_lshr_b32 s16, s2, 3")
        a("s_and_b32 s17, s2, 7")
    a("s_lshl_b32 s18, s16, 21")
    a("s_lshl_b32 s19, s17, 18")
    a("s_or_b32 s18, s18, s19")
    a("s_add_u32 s18, s18, 4096")
    a("s_lshl_b32 s19, s16, 9")
    a(f"v_and_b32 v{vL}, 63, v0")
    a(f"v_lshrrev_b32 v{vW}, 6, v0")
    a(f"v_lshlrev_b32 v{vT}, {int(math.log2(CH))}, v{vW}")
    a(f"v_add_u32 v{vT}, s18, v{vT}")
    a(f"v_lshrrev_b32 v{vX}, 4, v{vL}")
    a(f"v_and_b32 v{vY}, 3, v{vL}")
    a(f"v_lshlrev_b32 v{vY}, 4, v{vY}")
    a(f"v_lshl_add_u32 v{vX}, v{vX}, 6, v{vY}")
    a(f"v_bfe_u32 v{vY}, v{vL}, 2, 2")
    a(f"v_lshl_add_u32 v{vKo}, v{vY}, 8, v{vX}")
    a(f"v_add_u32 v{vKo}, v{vKo}, v{vT}")
    for j in range(1, NB):
        a(f"v_add_u32 v{vKo+j}, {8192*j}, v{vKo}")
    a(f"v_bfe_u32 v{vY}, v{vL}, 3, 1")
    a(f"v_lshl_add_u32 v{vX}, v{vY}, 8, v{vX}")
    a(f"v_add_u32 v{vX}, s19, v{vX}")
    a("s_waitcnt lgkmcnt(0)")
    if stamps:
        a("s_memrealtime s[42:43]")
    a(f"global_load_dwordx4 {v4(vQ)}, v{vX}, s[4:5]")
    for t in range(NL):
        a(f"global_load_dwordx4 {dat(t)}, v{vKo + t//8}, s[6:7] offset:{(t%8)*1024-4096} {kflag}")
    a(f"v_lshl_add_u32 v{vVo}, v{vL}, 4, v{vT}")
    for j in range(1, NB):
        a(f"v_add_u32 v{vVo+j}, {8192*j}, v{vVo}")
    a(f"v_readfirstlane_b32 s20, v{vW}")
    a(f"v_mov_b32 v{vC}, 0x{SCALE:08x}")
    a(f"v_and_b32 v{vX}, 1, v{vL}")
    a(f"v_lshlrev_b32 v{vX}, 4, v{vX}")
    a(f"v_mov_b32 v{vY}, 0xffff")
    a(f"v_lshlrev_b32 v{vX}, v{vX}, v{vY}")
    a(f"v_bfe_u32 v{vY}, v{vL}, 1, 2")
    for q in range(4):
        a(f"v_cmp_eq_u32 vcc, {q}, v{vY}")
        a("s_nop 1")
        a(f"v_cndmask_b32 v{vMask+q}, 0, v{vX}, vcc")
    for q in range(4):
        a(f"v_mov_b32 v{vO+q}, 0")
    a(f"v_bfe_u32 v{vY}, v{vL}, 3, 1")
    a(f"v_lshlrev_b32 v{vY}, {int(math.log2(NW*4))}, v{vY}")
    a(f"v_lshl_add_u32 v{vT}, v{vW}, 2, v{vY}")
    for u in range(NL // 4):
        for i in range(4):
            n = min(NL - 1 - i, 63)
            a(f"s_waitcnt vmcnt({n})")
            if u == 0 and i == 0:
                stamp(2)
            a(f"v_mfma_f32_16x16x32_bf16 {v4(vD+4*i)}, {dat(4*u+i)}, {v4(vQ)}, 0")
        for i in range(4):
            t = 4 * u + i
            a(f"global_load_dwordx4 {dat(t)}, v{vVo + t//8}, s[8:9] offset:{(t%8)*1024-4096} {vflag}")
        a("s_nop 1")
        for q in range(4):
            for i in range(4):
                op = "v_mul_f32_dpp" if q == 0 else "v_fmac_f32_dpp"
                a(f"{op} v{vS+4*u+i}, v{vD+4*i+q}, v{vC} quad_perm:[{q},{q},{q},{q}] row_mask:0xf bank_mask:0xf")
    stamp(3)
    a(f"v_max3_f32 v{vM}, v{vS}, v{vS+1}, v{vS+2}")
    t = 3
    while t < NL:
        if t + 1 < NL:
            a(f"v_max3_f32 v{vM}, v{vM}, v{vS+t}, v{vS+t+1}")
            t += 2
        else:
            a(f"v_max_f32 v{vM}, v{vM}, v{vS+t}")
            t += 1
    def xreduce(reg, op):
        for sw in ("v_permlane16_swap_b32", "v_permlane32_swap_b32"):
            a(f"v_mov_b32 v{vX}, v{reg}")
            a("s_nop 1")
            a(f"{sw} v{reg}, v{vX}")
            a("s_nop 1")
            a(f"{op} v{reg}, v{reg}, v{vX}")
    xreduce(vM, "v_max_f32")
    a("s_mov_b64 exec, 0x101")
    a(f"ds_write_b32 v{vT}, v{vM} offset:{OFF_M}")
    a("s_mov_b64 exec, -1")
    a("s_waitcnt lgkmcnt(0)")
    a("s_barrier")
    for j in range(NW // 4):
        a(f"ds_read_b128 {v4(vD+4*j)}, v{vY} offset:{OFF_M+16*j}")
    a("s_waitcnt lgkmcnt(0)")
    t = 0
    while t < NW:
        a(f"v_max3_f32 v{vM}, v{vM}, v{vD+t}, v{vD+t+1}")
        t += 2
    for t in range(NL):
        a(f"v_sub_f32 v{vS+t}, v{vS+t}, v{vM}")
    for t in range(NL):
        a(f"v_exp_f32 v{vS+t}, v{vS+t}")
    a("s_nop 0")
    a(f"v_add_f32 v{vLs}, v{vS}, v{vS+1}")
    for t in range(2, NL):
        a(f"v_add_f32 v{vLs}, v{vLs}, v{vS+t}")
    for t in range(NL):
        a(f"v_cvt_pk_bf16_f32 v{vS+t}, v{vS+t}, v{vS+t}")
    xreduce(vLs, "v_add_f32")
    a("s_mov_b64 exec, 0x101")
    a(f"ds_write_b32 v{vT}, v{vLs} offset:{OFF_L}")
    a("s_mov_b64 exec, -1")
    a(f"v_readlane_b32 s22, v{vM}, 8")
    a(f"v_readlane_b32 s21, v{vM}, 0")
    a(f"v_cmp_gt_u32 vcc, 32, v{vL}")
    a(f"v_mov_b32 v{vX}, s22")
    a(f"v_mov_b32 v{vM}, s21")
    a(f"v_cndmask_b32 v{vM}, v{vX}, v{vM}, vcc")
    a(f"v_lshlrev_b32 v{vT}, 4, v0")
    a(f"v_lshrrev_b32 v{vY}, 5, v{vL}")
    a(f"v_lshlrev_b32 v{vY}, {int(math.log2(NW*4))}, v{vY}")
    for t in range(NL):
        for q in range(4):
            a(f"v_and_b32 v{vPd+q}, v{vS+t}, v{vMask+q}")
        a(f"s_waitcnt vmcnt({min(NL-1-t, 63)})")
        a("s_nop 0")
        a(f"v_mfma_f32_16x16x32_bf16 {v4(vO)}, {v4(vPd)}, {dat(t)}, {v4(vO)}")
    stamp(4)
    a("s_nop 7")
    a(f"ds_write_b128 v{vT}, {v4(vO)}")
    a("s_waitcnt lgkmcnt(0)")
    a("s_barrier")
    a("s_cmp_lg_u32 s20, 0")
    a("s_cbranch_scc1 L_end")
    tmp = vD
    base = vD
    avail = (nv - vD)
    need = 4 * (NW - 1) + NW
    assert avail >= need, (avail, need)
    for w in range(1, NW):
        a(f"ds_read_b128 {v4(base+4*(w-1))}, v{vT} offset:{1024*w}")
    lb = base + 4 * (NW - 1)
    for j in range(NW // 4):
        a(f"ds_read_b128 {v4(lb+4*j)}, v{vY} offset:{OFF_L+16*j}")
    nl = NW // 4
    for w in range(1, NW):
        a(f"s_waitcnt lgkmcnt({min(15, NW-1-w+nl)})")
        b = base + 4 * (w - 1)
        a(f"v_pk_add_f32 v[{vO}:{vO+1}], v[{vO}:{vO+1}], v[{b}:{b+1}]")
        a(f"v_pk_add_f32 v[{vO+2}:{vO+3}], v[{vO+2}:{vO+3}], v[{b+2}:{b+3}]")
    a("s_waitcnt lgkmcnt(0)")
    a(f"v_add_f32 v{vLs}, v{lb}, v{lb+1}")
    for w in range(2, NW):
        a(f"v_add_f32 v{vLs}, v{vLs}, v{lb+w}")
    a("s_lshl_b32 s18, s16, 3")
    a("s_or_b32 s18, s18, s17")
    a("s_lshl_b32 s18, s18, 11")
    a(f"v_add_u32 v{vX}, s18, v{vT}")
    a(f"v_lshl_add_u32 v{vY}, v{vL}, 3, s18")
    assert vLs == vM + 1 and vM % 2 == 1 or True
    a(f"v_mov_b32 v{vPd}, v{vM}")
    a(f"v_mov_b32 v{vPd+1}, v{vLs}")
    a(f"global_store_dwordx4 v{vX}, {v4(vO)}, s[14:15]")
    a(f"global_store_dwordx2 v{vY}, v[{vPd}:{vPd+1}], s[14:15] offset:1024")
    if stamps:
        a("s_waitcnt vmcnt(0)")
        stamp(5)
        a("s_getreg_b32 s52, hwreg(HW_REG_XCC_ID)")
        a("s_getreg_b32 s53, hwreg(HW_REG_HW_ID)")
        a("s_lshl_b32 s18, s2, 7")
        a("s_add_u32 s18, s18, 0x8000000")
        a(f"v_mov_b32 v{vX}, s18")
        for i in range(7):
            a(f"v_mov_b32 v{vD+2*i}, s{40+2*i}")
            a(f"v_mov_b32 v{vD+2*i+1}, s{41+2*i}")
        a("s_mov_b64 exec, 1")
        for i in range(7):
            a(f"global_store_dwordx2 v{vX}, v[{vD+2*i}:{vD+2*i+1}], s[14:15] offset:{8*i}")
    a.label("L_end")
    a("s_endpgm")
    out = a.text()
    c = Asm()
    c.raw(f".globl {comb}\n.p2align 8\n.type {comb},@function")
    c.label(comb)
    c("s_load_dwordx2 s[10:11], s[0:1], 24")
    c("s_load_dwordx2 s[14:15], s[0:1], 40")
    c("s_cmp_ge_u32 s2, 32")
    c("s_cbranch_scc1 L_cend")
    c("s_lshl_b32 s18, s2, 14")
    c("v_lshl_add_u32 v1, v0, 4, s18")
    c("v_lshl_add_u32 v2, v0, 3, s18")
    c("v_add_u32 v3, 0x2000, v1")
    c("v_add_u32 v4, 0x2000, v2")
    c("v_add_u32 v1, 0x1000, v1")
    c("v_add_u32 v3, 0x1000, v3")
    c("v_add_u32 v2, 0x1000, v2")
    c("v_add_u32 v4, 0x1000, v4")
    c("s_waitcnt lgkmcnt(0)")
    for s in range(8):
        c(f"global_load_dwordx2 v[{8+2*s}:{9+2*s}], v{2 if s<4 else 4}, s[14:15] offset:{(s%4)*2048-4096+1024}")
    for s in range(8):
        c(f"global_load_dwordx4 v[{24+4*s}:{27+4*s}], v{1 if s<4 else 3}, s[14:15] offset:{(s%4)*2048-4096}")
    c("s_lshl_b32 s18, s2, 9")
    c("v_lshrrev_b32 v5, 5, v0")
    c("v_lshlrev_b32 v5, 8, v5")
    c("v_and_b32 v6, 15, v0")
    c("v_lshl_add_u32 v5, v6, 4, v5")
    c("v_bfe_u32 v6, v0, 4, 1")
    c("v_lshl_add_u32 v5, v6, 3, v5")
    c("v_add_u32 v5, s18, v5")
    c("s_waitcnt vmcnt(8)")
    c("v_max3_f32 v6, v8, v10, v12")
    c("v_max3_f32 v6, v6, v14, v16")
    c("v_max3_f32 v6, v6, v18, v20")
    c("v_max_f32 v6, v6, v22")
    for s in range(8):
        c(f"v_sub_f32 v{8+2*s}, v{8+2*s}, v6")
    for s in range(8):
        c(f"v_exp_f32 v{8+2*s}, v{8+2*s}")
    c("s_nop 0")
    c("v_mul_f32 v7, v8, v9")
    for s in range(1, 8):
        c(f"v_fmac_f32 v7, v{8+2*s}, v{9+2*s}")
    c("v_rcp_f32 v7, v7")
    c("s_waitcnt vmcnt(0)")
    for q in range(4):
        c(f"v_mul_f32 v{56+q}, v8, v{24+q}")
    for s in range(1, 8):
        for q in range(4):
            c(f"v_fmac_f32 v{56+q}, v{8+2*s}, v{24+4*s+q}")
    for q in range(4):
        c(f"v_mul_f32 v{56+q}, v7, v{56+q}")
    c("v_cvt_pk_bf16_f32 v56, v56, v57")
    c("v_cvt_pk_bf16_f32 v57, v58, v59")
    c("global_store_dwordx2 v5, v[56:57], s[10:11]")
    c.label("L_cend")
    c("s_endpgm")
    out += c.text()
    if spin is not None:
        i0, i1, mult = spin
        d = Asm()
        d.raw(".globl spin_kernel\n.p2align 8\n.type spin_kernel,@function")
        d.label("spin_kernel")
        d("s_load_dwordx2 s[14:15], s[0:1], 40")
        d("s_cmp_ge_u32 s2, 1")
        d("s_cbranch_scc1 L_send")
        d("v_lshlrev_b32 v1, 7, v0")
        d("v_add_u32 v1, 0x8000000, v1")
        for j in range(1, 4):
            d(f"v_add_u32 v{1+j}, {64*128*j}, v1")
        d("s_waitcnt lgkmcnt(0)")
        for j in range(4):
            d(f"global_load_dword v{8+j}, v{1+j}, s[14:15] offset:{8*i0}")
            d(f"global_load_dword v{12+j}, v{1+j}, s[14:15] offset:{8*i1}")
        d("s_waitcnt vmcnt(0)")
        d("v_min_u32 v8, v8, v9"); d("v_min_u32 v10, v10, v11"); d("v_min_u32 v8, v8, v10")
        d("v_max_u32 v12, v12, v13"); d("v_max_u32 v14, v14, v15"); d("v_max_u32 v12, v12, v14")
        d("s_mov_b32 s20, -1"); d("s_mov_b32 s21, 0"); d("s_mov_b32 s22, 0")
        d.label("L_red")
        d("s_nop 4")
        d("v_readlane_b32 s23, v8, s22")
        d("v_readlane_b32 s24, v12, s22")
        d("s_nop 4")
        d("s_min_u32 s20, s20, s23")
        d("s_max_u32 s21, s21, s24")
        d("s_add_u32 s22, s22, 1")
        d("s_cmp_lt_u32 s22, 64")
        d("s_cbranch_scc1 L_red")
        d("s_sub_u32 s21, s21, s20")
        d("s_min_u32 s21, s21, 20000")
        d(f"s_mul_i32 s21, s21, {mult}")
        d("s_memrealtime s[24:25]")
        d("s_waitcnt lgkmcnt(0)")
        d.label("L_spin")
        d("s_memrealtime s[26:27]")
        d("s_waitcnt lgkmcnt(0)")
        d("s_sub_u32 s28, s26, s24")
        d("s_cmp_lt_u32 s28, s21")
        d("s_cbranch_scc1 L_spin")
        d.label("L_send")
        d("s_endpgm")
        out += d.text()
    out += desc(main, total_decl, 64, accum)
    if spin is not None:
        out += desc("spin_kernel", 64, 32, 64)
    out += desc(comb, 64, 32, 64)
    return out

if __name__ == "__main__":
    p = argparse.ArgumentParser()
    p.add_argument("--nw", type=int, default=16)
    p.add_argument("--mode", default="two")
    p.add_argument("--k", default="")
    p.add_argument("--v", default="")
    p.add_argument("--noxcd", action="store_true")
    p.add_argument("--stamps", action="store_true")
    p.add_argument("--spin", default=None)
    p.add_argument("--reps", type=int, default=1)
    p.add_argument("--creps", type=int, default=1)
    p.add_argument("-o", default="-")
    x = p.parse_args()
    s = gen(x.nw, x.mode, x.k, x.v, not x.noxcd, x.stamps, None if x.spin is None else tuple(int(t) for t in x.spin.split(",")), x.reps, x.creps)
    if x.o == "-":
        sys.stdout.write(s)
    else:
        open(x.o, "w").write(s)
```

```python
import sys, math, argparse
from gen import Asm, desc, HDR, NAME, SCALE

def spin_kernel(spin):
    i0, i1, mult, red = spin
    d = Asm()
    d.raw(".globl spin_kernel\n.p2align 8\n.type spin_kernel,@function")
    d.label("spin_kernel")
    d("s_load_dwordx2 s[14:15], s[0:1], 40")
    d("s_cmp_ge_u32 s2, 1")
    d("s_cbranch_scc1 L_send")
    d("v_lshlrev_b32 v1, 7, v0")
    d("v_add_u32 v1, 0x8000000, v1")
    for j in range(1, 4):
        d(f"v_add_u32 v{1+j}, {64*128*j}, v1")
    d("s_waitcnt lgkmcnt(0)")
    for j in range(4):
        d(f"global_load_dword v{8+j}, v{1+j}, s[14:15] offset:{8*i0}")
        d(f"global_load_dword v{12+j}, v{1+j}, s[14:15] offset:{8*i1}")
    d("s_waitcnt vmcnt(0)")
    op = "max" if red else "min"
    d("v_min_u32 v8, v8, v9"); d("v_min_u32 v10, v10, v11"); d("v_min_u32 v8, v8, v10")
    d(f"v_{op}_u32 v12, v12, v13"); d(f"v_{op}_u32 v14, v14, v15"); d(f"v_{op}_u32 v12, v12, v14")
    d("s_mov_b32 s20, -1"); d(f"s_mov_b32 s21, {0 if red else -1}"); d("s_mov_b32 s22, 0")
    d.label("L_red")
    d("s_nop 4")
    d("v_readlane_b32 s23, v8, s22")
    d("v_readlane_b32 s24, v12, s22")
    d("s_nop 4")
    d("s_min_u32 s20, s20, s23")
    d(f"s_{op}_u32 s21, s21, s24")
    d("s_add_u32 s22, s22, 1")
    d("s_cmp_lt_u32 s22, 64")
    d("s_cbranch_scc1 L_red")
    d("s_sub_u32 s21, s21, s20")
    d("s_min_u32 s21, s21, 20000")
    d(f"s_mul_i32 s21, s21, {mult}")
    d("s_memrealtime s[24:25]")
    d("s_waitcnt lgkmcnt(0)")
    d.label("L_spin")
    d("s_memrealtime s[26:27]")
    d("s_waitcnt lgkmcnt(0)")
    d("s_sub_u32 s28, s26, s24")
    d("s_cmp_lt_u32 s28, s21")
    d("s_cbranch_scc1 L_spin")
    d.label("L_send")
    d("s_endpgm")
    return d.text()

def gen(NW=8, flag="nt", xcd=True, stamps=False, spin=None, TURN=4):
    NSPLIT = 8
    NWG = 32 * NSPLIT
    NL = 256 // NW
    NB = NL // TURN
    use_acc = (NW == 4)
    OFF_M = NW * 1024
    OFF_L = OFF_M + 2 * NW * 4
    LDS = OFF_L + 2 * NW * 4
    main = NAME + "_kernel"
    a = Asm()
    r = 1
    def alloc(n, align=1):
        nonlocal r
        r = (r + align - 1) // align * align
        b = r
        r += n
        return b
    vL = alloc(1); vW = alloc(1); vT = alloc(1); vC = alloc(1)
    vX = alloc(1); vY = alloc(1); vR1 = alloc(1); vR2 = alloc(1); vF = alloc(1)
    vM = alloc(2, 2); vLs = vM + 1
    vKo = alloc(NB); vVo = alloc(NB)
    vQ = alloc(4, 4); vMask = alloc(4, 4); vPd = alloc(4, 4); vO = alloc(4, 4)
    vD = alloc(16, 4)
    vS = alloc(NL, 4)
    if use_acc:
        nv = r
        accum = (nv + 3) // 4 * 4
        def dat(t): return f"a[{4*t}:{4*t+3}]"
        total = accum + 4 * NL
    else:
        vDat = alloc(4 * NL, 4)
        nv = r
        accum = (nv + 3) // 4 * 4
        def dat(t): return f"v[{vDat+4*t}:{vDat+4*t+3}]"
        total = nv
    limit = {16: 128, 8: 256, 4: 512}[NW]
    assert total <= limit, (total, limit)
    total_decl = limit
    if not use_acc:
        accum = min(256, total_decl)
    def v4(b): return f"v[{b}:{b+3}]"
    IMM0 = -4096 if TURN == 8 else 0
    def ld(t, vo, base):
        a(f"global_load_dwordx4 {dat(t)}, v{vo + t//TURN}, {base} offset:{(t%TURN)*1024+IMM0} {flag}")

    hdr = HDR
    if spin is not None:
        hdr += f"; @launch kernel={main} grid=({NWG},1,1) block=({NW*64},1,1) lds={LDS}\n"
        hdr += f"; @launch kernel=spin_kernel grid=(1,1,1) block=(64,1,1) lds=0\n"
    else:
        hdr += f"; @launch grid=({NWG},1,1) block=({NW*64},1,1) lds={LDS}\n"
    a.raw(hdr + '.amdgcn_target "amdgcn-amd-amdhsa--gfx950"\n.text')
    a.raw(f".globl {main}\n.p2align 8\n.type {main},@function")
    a.label(main)
    a("s_load_dwordx8 s[4:11], s[0:1], 0")
    a("s_load_dwordx4 s[12:15], s[0:1], 32")
    def stamp(i):
        if stamps:
            a(f"s_memrealtime s[{40+2*i}:{41+2*i}]")
            a("s_waitcnt lgkmcnt(0)")
    if stamps:
        a("s_memrealtime s[40:41]")
    a(f"s_cmp_ge_u32 s2, {NWG}")
    a("s_cbranch_scc1 L_end")
    if xcd:
        a("s_and_b32 s16, s2, 7")
        a("s_lshl_b32 s16, s16, 2")
        a("s_bfe_u32 s17, s2, 0x20003")
        a("s_or_b32 s16, s16, s17")
        a("s_lshr_b32 s17, s2, 5")
    else:
        a("s_lshr_b32 s16, s2, 3")
        a("s_and_b32 s17, s2, 7")
    a("s_lshl_b32 s18, s16, 21")
    a("s_lshl_b32 s19, s17, 18")
    a("s_or_b32 s18, s18, s19")
    if IMM0:
        a(f"s_add_u32 s18, s18, {-IMM0}")
    a("s_lshl_b32 s19, s16, 9")
    a(f"v_and_b32 v{vL}, 63, v0")
    a(f"v_lshrrev_b32 v{vW}, 6, v0")
    a(f"v_lshlrev_b32 v{vT}, {int(math.log2(TURN*1024))}, v{vW}")
    a(f"v_add_u32 v{vT}, s18, v{vT}")
    a(f"v_lshrrev_b32 v{vX}, 4, v{vL}")
    a(f"v_and_b32 v{vY}, 3, v{vL}")
    a(f"v_lshlrev_b32 v{vY}, 4, v{vY}")
    a(f"v_lshl_add_u32 v{vX}, v{vX}, 6, v{vY}")
    a(f"v_bfe_u32 v{vY}, v{vL}, 2, 2")
    a(f"v_lshl_add_u32 v{vKo}, v{vY}, 8, v{vX}")
    a(f"v_add_u32 v{vKo}, v{vKo}, v{vT}")
    STEP = TURN * 1024 * NW
    for j in range(1, NB):
        a(f"v_add_u32 v{vKo+j}, {STEP*j}, v{vKo}")
    a(f"v_bfe_u32 v{vY}, v{vL}, 3, 1")
    a(f"v_lshl_add_u32 v{vX}, v{vY}, 8, v{vX}")
    a(f"v_add_u32 v{vX}, s19, v{vX}")
    a(f"v_readfirstlane_b32 s20, v{vW}")
    a("s_lshl_b32 s23, s16, 3")
    a("s_or_b32 s23, s23, s17")
    a("s_lshl_b32 s23, s23, 11")
    a(f"v_lshl_add_u32 v{vR1}, v{vL}, 4, s23")
    a(f"v_lshl_add_u32 v{vR2}, v{vL}, 3, s23")
    for q in range(4):
        a(f"v_mov_b32 v{vPd+q}, -1")
    a("s_cmp_lg_u32 s17, 0")
    a("s_cselect_b32 s24, 1, 0")
    a(f"s_cmp_eq_u32 s20, {NW-1}")
    a("s_cselect_b32 s24, s24, 0")
    a("s_cmp_eq_u32 s24, 0")
    a("s_waitcnt lgkmcnt(0)")
    if stamps:
        a("s_memrealtime s[42:43]")
    a("s_cbranch_scc1 L_noclear")
    a(f"global_store_dwordx4 v{vR1}, {v4(vPd)}, s[14:15] sc1")
    a(f"global_store_dwordx2 v{vR2}, v[{vPd}:{vPd+1}], s[14:15] offset:1024 sc1")
    a.label("L_noclear")
    a(f"global_load_dwordx4 {v4(vQ)}, v{vX}, s[4:5]")
    for t in range(NL):
        ld(t, vKo, "s[6:7]")
    a(f"v_lshl_add_u32 v{vVo}, v{vL}, 4, v{vT}")
    for j in range(1, NB):
        a(f"v_add_u32 v{vVo+j}, {STEP*j}, v{vVo}")
    a(f"v_mov_b32 v{vC}, 0x{SCALE:08x}")
    a(f"v_and_b32 v{vX}, 1, v{vL}")
    a(f"v_lshlrev_b32 v{vX}, 4, v{vX}")
    a(f"v_mov_b32 v{vY}, 0xffff")
    a(f"v_lshlrev_b32 v{vX}, v{vX}, v{vY}")
    a(f"v_bfe_u32 v{vY}, v{vL}, 1, 2")
    for q in range(4):
        a(f"v_cmp_eq_u32 vcc, {q}, v{vY}")
        a("s_nop 1")
        a(f"v_cndmask_b32 v{vMask+q}, 0, v{vX}, vcc")
    for q in range(4):
        a(f"v_mov_b32 v{vO+q}, 0")
    a(f"v_bfe_u32 v{vY}, v{vL}, 3, 1")
    a(f"v_lshlrev_b32 v{vY}, {int(math.log2(NW*4))}, v{vY}")
    a(f"v_lshl_add_u32 v{vT}, v{vW}, 2, v{vY}")
    a("s_lshl_b32 s25, s16, 2")
    for u in range(NL // 4):
        for i in range(4):
            n = min(NL - 1 - i, 63)
            a(f"s_waitcnt vmcnt({n})")
            if u == 0 and i == 0:
                stamp(2)
            a(f"v_mfma_f32_16x16x32_bf16 {v4(vD+4*i)}, {dat(4*u+i)}, {v4(vQ)}, 0")
        for i in range(4):
            ld(4 * u + i, vVo, "s[8:9]")
        a("s_nop 1")
        for q in range(4):
            for i in range(4):
                op = "v_mul_f32_dpp" if q == 0 else "v_fmac_f32_dpp"
                a(f"{op} v{vS+4*u+i}, v{vD+4*i+q}, v{vC} quad_perm:[{q},{q},{q},{q}] row_mask:0xf bank_mask:0xf")
    stamp(3)
    a("s_cmp_eq_u32 s24, 0")
    a("s_cbranch_scc1 L_nosig")
    a(f"v_mov_b32 v{vX}, s25")
    a(f"v_mov_b32 v{vF}, 1")
    a("s_mov_b64 exec, 1")
    a(f"global_atomic_add v{vX}, v{vF}, s[12:13] sc1")
    a("s_mov_b64 exec, -1")
    a.label("L_nosig")
    a(f"v_max3_f32 v{vM}, v{vS}, v{vS+1}, v{vS+2}")
    t = 3
    while t < NL:
        if t + 1 < NL:
            a(f"v_max3_f32 v{vM}, v{vM}, v{vS+t}, v{vS+t+1}")
            t += 2
        else:
            a(f"v_max_f32 v{vM}, v{vM}, v{vS+t}")
            t += 1
    def xreduce(reg, op):
        for sw in ("v_permlane16_swap_b32", "v_permlane32_swap_b32"):
            a(f"v_mov_b32 v{vX}, v{reg}")
            a("s_nop 1")
            a(f"{sw} v{reg}, v{vX}")
            a("s_nop 1")
            a(f"{op} v{reg}, v{reg}, v{vX}")
    xreduce(vM, "v_max_f32")
    a("s_mov_b64 exec, 0x101")
    a(f"ds_write_b32 v{vT}, v{vM} offset:{OFF_M}")
    a("s_mov_b64 exec, -1")
    a("s_waitcnt lgkmcnt(0)")
    a("s_barrier")
    for j in range(NW // 4):
        a(f"ds_read_b128 {v4(vD+4*j)}, v{vY} offset:{OFF_M+16*j}")
    a("s_waitcnt lgkmcnt(0)")
    t = 0
    while t < NW:
        a(f"v_max3_f32 v{vM}, v{vM}, v{vD+t}, v{vD+t+1}")
        t += 2
    for t in range(NL):
        a(f"v_sub_f32 v{vS+t}, v{vS+t}, v{vM}")
    for t in range(NL):
        a(f"v_exp_f32 v{vS+t}, v{vS+t}")
    a("s_nop 0")
    a(f"v_add_f32 v{vLs}, v{vS}, v{vS+1}")
    for t in range(2, NL):
        a(f"v_add_f32 v{vLs}, v{vLs}, v{vS+t}")
    for t in range(NL):
        a(f"v_cvt_pk_bf16_f32 v{vS+t}, v{vS+t}, v{vS+t}")
    xreduce(vLs, "v_add_f32")
    a("s_mov_b64 exec, 0x101")
    a(f"ds_write_b32 v{vT}, v{vLs} offset:{OFF_L}")
    a("s_mov_b64 exec, -1")
    a(f"v_readlane_b32 s22, v{vM}, 8")
    a(f"v_readlane_b32 s21, v{vM}, 0")
    a(f"v_cmp_gt_u32 vcc, 32, v{vL}")
    a(f"v_mov_b32 v{vX}, s22")
    a(f"v_mov_b32 v{vM}, s21")
    a(f"v_cndmask_b32 v{vM}, v{vX}, v{vM}, vcc")
    a(f"v_lshlrev_b32 v{vT}, 4, v0")
    a(f"v_lshrrev_b32 v{vY}, 5, v{vL}")
    a(f"v_lshlrev_b32 v{vY}, {int(math.log2(NW*4))}, v{vY}")
    for t in range(NL):
        for q in range(4):
            a(f"v_and_b32 v{vPd+q}, v{vS+t}, v{vMask+q}")
        a(f"s_waitcnt vmcnt({min(NL-1-t, 63)})")
        a("s_nop 0")
        a(f"v_mfma_f32_16x16x32_bf16 {v4(vO)}, {v4(vPd)}, {dat(t)}, {v4(vO)}")
    stamp(4)
    a("s_or_b32 s26, s17, s20")
    a("s_cmp_lg_u32 s26, 0")
    a("s_cbranch_scc1 L_nocnt")
    a(f"v_mov_b32 v{vX}, s25")
    a(f"global_load_dword v{vF}, v{vX}, s[12:13] sc1")
    a.label("L_nocnt")
    a("s_nop 7")
    a(f"ds_write_b128 v{vT}, {v4(vO)}")
    a("s_waitcnt lgkmcnt(0)")
    a("s_barrier")
    a("s_cmp_lg_u32 s20, 0")
    a("s_cbranch_scc1 L_end")
    base = vD
    avail = (nv - vD)
    need = max(4 * (NW - 1) + NW, 7 * 6 + 8)
    assert avail >= need, (avail, need)
    for w in range(1, NW):
        a(f"ds_read_b128 {v4(base+4*(w-1))}, v{vT} offset:{1024*w}")
    lb = base + 4 * (NW - 1)
    for j in range(NW // 4):
        a(f"ds_read_b128 {v4(lb+4*j)}, v{vY} offset:{OFF_L+16*j}")
    nl = NW // 4
    for w in range(1, NW):
        a(f"s_waitcnt lgkmcnt({min(15, NW-1-w+nl)})")
        b = base + 4 * (w - 1)
        a(f"v_pk_add_f32 v[{vO}:{vO+1}], v[{vO}:{vO+1}], v[{b}:{b+1}]")
        a(f"v_pk_add_f32 v[{vO+2}:{vO+3}], v[{vO+2}:{vO+3}], v[{b+2}:{b+3}]")
    a("s_waitcnt lgkmcnt(0)")
    a(f"v_add_f32 v{vLs}, v{lb}, v{lb+1}")
    for w in range(2, NW):
        a(f"v_add_f32 v{vLs}, v{vLs}, v{lb+w}")
    a("s_cmp_eq_u32 s17, 0")
    a("s_cbranch_scc1 L_consumer")
    for q in range(4):
        a(f"v_min_u32 v{vO+q}, -2, v{vO+q}")
    a(f"v_min_u32 v{vM}, -2, v{vM}")
    a(f"v_min_u32 v{vLs}, -2, v{vLs}")
    a(f"global_store_dwordx4 v{vR1}, {v4(vO)}, s[14:15] sc1")
    a(f"global_store_dwordx2 v{vR2}, v[{vM}:{vM+1}], s[14:15] offset:1024 sc1")
    a("s_branch L_fin")
    a.label("L_consumer")
    a("s_mov_b32 s27, 0x100000")
    a.label("L_cnt")
    a("s_waitcnt vmcnt(0)")
    a(f"v_cmp_ne_u32 vcc, 7, v{vF}")
    a("s_cbranch_vccz L_poll0")
    a(f"global_load_dword v{vF}, v{vX}, s[12:13] sc1")
    a("s_sub_u32 s27, s27, 1")
    a("s_cbranch_scc0 L_cnt")
    a.label("L_poll0")
    pO = base
    pML = base + 28
    vA = base + 42; vB = base + 43; vMx = base + 44; vOut = base + 45
    a(f"v_add_u32 v{vR1}, 4096, v{vR1}")
    a(f"v_add_u32 v{vR2}, 4096, v{vR2}")
    a(f"v_add_u32 v{vA}, 8192, v{vR1}")
    a(f"v_add_u32 v{vB}, 8192, v{vR2}")
    a(f"v_lshrrev_b32 v{vOut}, 5, v{vL}")
    a(f"v_lshlrev_b32 v{vOut}, 8, v{vOut}")
    a(f"v_and_b32 v{vX}, 15, v{vL}")
    a(f"v_lshl_add_u32 v{vOut}, v{vX}, 4, v{vOut}")
    a(f"v_bfe_u32 v{vX}, v{vL}, 4, 1")
    a(f"v_lshl_add_u32 v{vOut}, v{vX}, 3, v{vOut}")
    a(f"v_add_u32 v{vOut}, s19, v{vOut}")
    a.label("L_poll")
    for s in range(1, 8):
        a(f"global_load_dwordx2 v[{pML+2*(s-1)}:{pML+2*(s-1)+1}], v{vR2 if s<4 else vB}, s[14:15] offset:{(s%4)*2048-4096+1024} sc1")
        a(f"global_load_dwordx4 {v4(pO+4*(s-1))}, v{vR1 if s<4 else vA}, s[14:15] offset:{(s%4)*2048-4096} sc1")
    a("s_waitcnt vmcnt(0)")
    a(f"v_max3_u32 v{vMx}, v{base}, v{base+1}, v{base+2}")
    t = 3
    while t < 42:
        if t + 1 < 42:
            a(f"v_max3_u32 v{vMx}, v{vMx}, v{base+t}, v{base+t+1}"); t += 2
        else:
            a(f"v_max_u32 v{vMx}, v{vMx}, v{base+t}"); t += 1
    a(f"v_cmp_eq_u32 vcc, -1, v{vMx}")
    a("s_cbranch_vccz L_go")
    a("s_sub_u32 s27, s27, 1")
    a("s_cbranch_scc0 L_poll")
    a.label("L_go")
    a(f"v_max3_f32 v{vMx}, v{vM}, v{pML}, v{pML+2}")
    a(f"v_max3_f32 v{vMx}, v{vMx}, v{pML+4}, v{pML+6}")
    a(f"v_max3_f32 v{vMx}, v{vMx}, v{pML+8}, v{pML+10}")
    a(f"v_max_f32 v{vMx}, v{vMx}, v{pML+12}")
    ms = [vM] + [pML + 2 * i for i in range(7)]
    os_ = [vO] + [pO + 4 * i for i in range(7)]
    for m in ms:
        a(f"v_sub_f32 v{m}, v{m}, v{vMx}")
    for m in ms:
        a(f"v_exp_f32 v{m}, v{m}")
    a("s_nop 0")
    a(f"v_mul_f32 v{vX}, v{ms[0]}, v{ms[0]+1}")
    for m in ms[1:]:
        a(f"v_fmac_f32 v{vX}, v{m}, v{m+1}")
    a(f"v_rcp_f32 v{vX}, v{vX}")
    for q in range(4):
        a(f"v_mul_f32 v{vO+q}, v{ms[0]}, v{vO+q}")
    for m, o in zip(ms[1:], os_[1:]):
        for q in range(4):
            a(f"v_fmac_f32 v{vO+q}, v{m}, v{o+q}")
    for q in range(4):
        a(f"v_mul_f32 v{vO+q}, v{vX}, v{vO+q}")
    a(f"v_cvt_pk_bf16_f32 v{vO}, v{vO}, v{vO+1}")
    a(f"v_cvt_pk_bf16_f32 v{vO+1}, v{vO+2}, v{vO+3}")
    a(f"global_store_dwordx2 v{vOut}, v[{vO}:{vO+1}], s[10:11]")
    a.label("L_fin")
    if stamps:
        a("s_waitcnt vmcnt(0)")
        stamp(5)
        a("s_getreg_b32 s52, hwreg(HW_REG_XCC_ID)")
        a("s_getreg_b32 s53, hwreg(HW_REG_HW_ID)")
        a("s_lshl_b32 s18, s2, 7")
        a("s_add_u32 s18, s18, 0x8000000")
        a(f"v_mov_b32 v{vX}, s18")
        for i in range(7):
            a(f"v_mov_b32 v{vD+2*i}, s{40+2*i}")
            a(f"v_mov_b32 v{vD+2*i+1}, s{41+2*i}")
        a("s_mov_b64 exec, 1")
        for i in range(7):
            a(f"global_store_dwordx2 v{vX}, v[{vD+2*i}:{vD+2*i+1}], s[14:15] offset:{8*i}")
    a.label("L_end")
    a("s_endpgm")
    out = a.text()
    if spin is not None:
        out += spin_kernel(spin)
    out += desc(main, total_decl, 64, accum)
    if spin is not None:
        out += desc("spin_kernel", 64, 32, 64)
    return out

if __name__ == "__main__":
    p = argparse.ArgumentParser()
    p.add_argument("--nw", type=int, default=8)
    p.add_argument("--flag", default="nt")
    p.add_argument("--noxcd", action="store_true")
    p.add_argument("--stamps", action="store_true")
    p.add_argument("--spin", default=None)
    p.add_argument("--turn", type=int, default=4)
    p.add_argument("-o", default="-")
    x = p.parse_args()
    s = gen(x.nw, x.flag, not x.noxcd, x.stamps, None if x.spin is None else tuple(int(t) for t in x.spin.split(",")), x.turn)
    open(x.o, "w").write(s) if x.o != "-" else sys.stdout.write(s)
```

```python
import sys, math, argparse
from gen import Asm, desc, HDR, NAME, SCALE
from gen2 import spin_kernel

INVALID = 0x40000000
CNT_BASE = 0x100000

def gen(NW=4, T4=4, flag="nt", xmap="rot", stamps=False, spin=None, RING=2, NLOC=64, DYN=0, LATE=False, CHK=None, ABL=""):
    NWG = 256
    TB = T4 * 1024
    LTB = int(math.log2(TB))
    WT = 262144 // TB
    if DYN < 2:
        NLOC = WT
    assert RING * NW <= NLOC <= WT
    NGLOB = (WT - NLOC) * 8
    if CHK is None:
        CHK = NLOC // 2
    OW = 1408
    OFF_M = NW * OW
    OFF_L = OFF_M + 2 * NW * 4
    OFF_C = OFF_L + 2 * NW * 4
    LDS = OFF_C + 16
    main = NAME + "_kernel"
    a = Asm()
    r = 1
    def alloc(n, align=1):
        nonlocal r
        r = (r + align - 1) // align * align
        b = r
        r += n
        return b
    vL = alloc(1); vW = alloc(1); vT = alloc(1); vC = alloc(1)
    vX = alloc(1); vY = alloc(1); vR1 = alloc(1); vR2 = alloc(1); vF = alloc(1)
    vKl = alloc(1); vVl = alloc(1); vA0 = alloc(1); vCnt = alloc(1); vDbg = alloc(1)
    vZ = alloc(1); vI1 = alloc(1); vCl = alloc(1); vWa = alloc(1); vWm = alloc(1); vRa = alloc(1); vRm = alloc(1)
    vM = alloc(2, 2); vLs = vM + 1
    vQ = alloc(4, 4); vMask = alloc(4, 4); vPd = alloc(4, 4); vO = alloc(4, 4); vLa = alloc(4, 4); vOne = alloc(4, 4)
    vS = alloc(T4, 4)
    vD = alloc(4 * T4, 4)
    vK = alloc(RING * 4 * T4, 4)
    vV = alloc(RING * 4 * T4, 4)
    vTmp = alloc(max(6 * NW, 48), 4)
    nv = r
    limit = {16: 128, 8: 256, 4: 512}[NW]
    assert nv <= min(limit, 256), (nv, limit)
    total_decl = limit
    accum = min(256, total_decl)
    def v4(b): return f"v[{b}:{b+3}]"
    def kb(s, t): return v4(vK + (s * T4 + t) * 4)
    def vb(s, t): return v4(vV + (s * T4 + t) * 4)
    sG, sSp, sWin, sG512, sWv = 16, 17, 18, 19, 20
    sRec, sRole, sMode, sNext, sGc, sT, sT2 = 23, 24, 25, 26, 27, 28, 29
    sIdx = 22
    sOff = 56
    sCnt = 60
    def ldk(s):
        a(f"v_add_u32 v{vA0}, s{sOff+s}, v{vKl}")
        for t in range(T4):
            so = "0" if t < 4 else "s30"
            a(f"buffer_load_dwordx4 {kb(s,t)}, v{vA0}, s[8:11], {so} offen offset:{(t%4)*1024} {flag}")
    def ldv(s):
        a(f"v_add_u32 v{vA0}, s{sOff+s}, v{vVl}")
        for t in range(T4):
            so = "0" if t < 4 else "s30"
            a(f"buffer_load_dwordx4 {vb(s,t)}, v{vA0}, s[12:15], {so} offen offset:{(t%4)*1024} {flag}")

    hdr = HDR
    if spin is not None:
        hdr += f"; @launch kernel={main} grid=({NWG},1,1) block=({NW*64},1,1) lds={LDS}\n"
        hdr += f"; @launch kernel=spin_kernel grid=(1,1,1) block=(64,1,1) lds=0\n"
    else:
        hdr += f"; @launch grid=({NWG},1,1) block=({NW*64},1,1) lds={LDS}\n"
    a.raw(hdr + '.amdgcn_target "amdgcn-amd-amdhsa--gfx950"\n.text')
    a.raw(f".globl {main}\n.p2align 8\n.type {main},@function")
    a.label(main)
    a("s_load_dwordx4 s[4:7], s[0:1], 0")
    a("s_load_dwordx8 s[32:39], s[0:1], 16")
    def stamp(i):
        if stamps:
            a(f"s_memrealtime s[{40+2*i}:{41+2*i}]")
            a("s_waitcnt lgkmcnt(0)")
    if stamps:
        a("s_memrealtime s[40:41]")
    a(f"s_cmp_ge_u32 s2, {NWG}")
    a("s_cbranch_scc1 L_end")
    a(f"v_lshrrev_b32 v{vW}, 6, v0")
    a(f"v_mov_b32 v{vZ}, 0")
    if DYN:
        a(f"v_mov_b32 v{vX}, {RING*NW}")
        a(f"ds_write_b32 v{vZ}, v{vX} offset:{OFF_C}")
    if xmap == "xcd":
        a(f"s_and_b32 s{sG}, s2, 7")
        a(f"s_lshl_b32 s{sG}, s{sG}, 2")
        a(f"s_bfe_u32 s{sSp}, s2, 0x20003")
        a(f"s_or_b32 s{sG}, s{sG}, s{sSp}")
        a(f"s_lshr_b32 s{sSp}, s2, 5")
    else:
        a(f"s_lshr_b32 s{sG}, s2, 3")
        a(f"s_add_u32 s{sSp}, s2, s{sG}")
        a(f"s_and_b32 s{sSp}, s{sSp}, 7")
    a(f"v_readfirstlane_b32 s{sWv}, v{vW}")
    a(f"s_lshl_b32 s21, s{sG}, 21")
    a(f"s_lshl_b32 s{sWin}, s{sSp}, 18")
    a(f"s_lshl_b32 s{sG512}, s{sG}, 9")
    a("s_mov_b32 s10, 0x200000")
    a("s_mov_b32 s11, 0x20000")
    a("s_mov_b32 s14, 0x200000")
    a("s_mov_b32 s15, 0x20000")
    if T4 > 4:
        a("s_movk_i32 s30, 0x1000")
    a(f"s_lshl_b32 s{sT}, s{sWv}, {LTB}")
    a(f"s_add_u32 s{sOff}, s{sWin}, s{sT}")
    for s in range(1, RING):
        a(f"s_add_u32 s{sOff+s}, s{sOff}, {s*NW*TB}")
    a(f"v_and_b32 v{vL}, 63, v0")
    a(f"v_lshrrev_b32 v{vX}, 4, v{vL}")
    a(f"v_and_b32 v{vY}, 3, v{vL}")
    a(f"v_lshlrev_b32 v{vY}, 4, v{vY}")
    a(f"v_lshl_add_u32 v{vX}, v{vX}, 6, v{vY}")
    a(f"v_bfe_u32 v{vY}, v{vL}, 2, 2")
    a(f"v_lshl_add_u32 v{vKl}, v{vY}, 8, v{vX}")
    a(f"v_lshlrev_b32 v{vVl}, 4, v{vL}")
    a(f"v_bfe_u32 v{vY}, v{vL}, 3, 1")
    a(f"v_lshl_add_u32 v{vX}, v{vY}, 8, v{vX}")
    a(f"v_add_u32 v{vX}, s{sG512}, v{vX}")
    a("s_waitcnt lgkmcnt(0)")
    if DYN:
        a("s_barrier")
    if stamps:
        a("s_memrealtime s[42:43]")
    a("s_add_u32 s8, s6, s21")
    a("s_addc_u32 s9, s7, 0")
    a(f"global_load_dwordx4 {v4(vQ)}, v{vX}, s[4:5]")
    a("s_add_u32 s12, s32, s21")
    a("s_addc_u32 s13, s33, 0")
    for s in range(RING):
        ldk(s); ldv(s)
    INFL = 2 * RING * T4
    a(f"s_lshl_b32 s{sRec}, s{sG}, 3")
    a(f"s_or_b32 s{sRec}, s{sRec}, s{sSp}")
    a(f"s_lshl_b32 s{sRec}, s{sRec}, 11")
    a(f"v_lshl_add_u32 v{vR1}, v{vL}, 4, s{sRec}")
    a(f"v_lshrrev_b32 v{vY}, 5, v{vL}")
    a(f"v_lshl_add_u32 v{vR2}, v{vY}, 3, s{sRec}")
    a(f"s_lshl_b32 s{sT2}, s{sG}, 12")
    a(f"s_add_u32 s{sT2}, s{sT2}, {CNT_BASE}")
    a(f"s_add_u32 s{sCnt}, s38, s{sT2}")
    a(f"s_addc_u32 s{sCnt+1}, s39, 0")
    a(f"s_lshl_b32 s{sT}, s{sG}, 2")
    a(f"v_mov_b32 v{vDbg}, s{sT}")
    a(f"v_mov_b32 v{vI1}, 1")
    a(f"v_mov_b32 v{vCnt}, 0")
    a(f"s_cmp_eq_u32 s{sSp}, 0")
    a(f"s_cselect_b32 s{sRole}, 1, 2")
    a(f"s_cmp_eq_u32 s{sWv}, 0")
    a(f"s_cselect_b32 s{sRole}, s{sRole}, 0")
    a(f"s_cmp_lg_u32 s{sRole}, 1")
    a("s_cbranch_scc1 L_noclear")
    for q in range(4):
        a(f"v_mov_b32 v{vPd+q}, -1")
    a(f"v_add_u32 v{vR1}, 4096, v{vR1}")
    a(f"v_add_u32 v{vR2}, 4096, v{vR2}")
    a(f"v_add_u32 v{vX}, 8192, v{vR1}")
    a(f"v_add_u32 v{vY}, 8192, v{vR2}")
    if "X" not in ABL:
        for s in range(1, 8):
            a(f"global_store_dwordx4 v{vR1 if s<4 else vX}, {v4(vPd)}, s[38:39] offset:{(s%4)*2048-4096} sc1")
            a(f"global_store_dwordx2 v{vR2 if s<4 else vY}, v[{vPd}:{vPd+1}], s[38:39] offset:{(s%4)*2048-4096+1024} sc1")
    if NGLOB:
        a(f"global_store_dword v{vZ}, v{vZ}, s[{sCnt}:{sCnt+1}] sc1")
    a.label("L_noclear")
    a(f"v_mov_b32 v{vC}, 0x{SCALE:08x}")
    a(f"v_and_b32 v{vX}, 1, v{vL}")
    a(f"v_lshlrev_b32 v{vX}, 4, v{vX}")
    a(f"v_mov_b32 v{vY}, 0xffff")
    a(f"v_lshlrev_b32 v{vX}, v{vX}, v{vY}")
    a(f"v_bfe_u32 v{vY}, v{vL}, 1, 2")
    for q in range(4):
        a(f"v_cmp_eq_u32 vcc, {q}, v{vY}")
        a("s_nop 1")
        a(f"v_cndmask_b32 v{vMask+q}, 0, v{vX}, vcc")
    for q in range(4):
        a(f"v_mov_b32 v{vO+q}, 0")
        a(f"v_mov_b32 v{vLa+q}, 0")
        a(f"v_mov_b32 v{vOne+q}, 0x3f803f80")
    a(f"v_mov_b32 v{vM}, 0xff7fffff")
    a(f"s_mov_b32 s{sMode}, 0")
    a(f"s_add_u32 s{sIdx}, s{sWv}, {(RING-1)*NW}")
    a(f"v_lshrrev_b32 v{vX}, 4, v{vL}")
    a(f"v_mul_u32_u24 v{vX}, 40, v{vX}")
    a(f"v_and_b32 v{vY}, 7, v{vL}")
    a(f"v_add_u32 v{vX}, v{vX}, v{vY}")
    a(f"v_bfe_u32 v{vY}, v{vL}, 3, 1")
    a(f"v_mul_u32_u24 v{vT}, 176, v{vY}")
    a(f"v_add_lshl_u32 v{vX}, v{vX}, v{vT}, 2")
    a(f"v_mul_u32_u24 v{vT}, {OW}, v{vW}")
    a(f"v_add_u32 v{vWa}, v{vX}, v{vT}")
    a(f"v_lshlrev_b32 v{vY}, {int(math.log2(NW*4))}, v{vY}")
    a(f"v_lshl_add_u32 v{vWm}, v{vW}, 2, v{vY}")
    a(f"v_bfe_u32 v{vX}, v{vL}, 3, 2")
    a(f"v_mul_u32_u24 v{vX}, 40, v{vX}")
    a(f"v_and_b32 v{vY}, 7, v{vL}")
    a(f"v_lshl_add_u32 v{vX}, v{vY}, 2, v{vX}")
    a(f"v_lshrrev_b32 v{vY}, 5, v{vL}")
    a(f"v_mul_u32_u24 v{vT}, 176, v{vY}")
    a(f"v_add_lshl_u32 v{vRa}, v{vX}, v{vT}, 2")
    a(f"v_lshlrev_b32 v{vRm}, {int(math.log2(NW*4))}, v{vY}")
    uid = [0]
    def claim_issue():
        if not DYN:
            return
        uid[0] += 1
        u = uid[0]
        a(f"s_cmp_lg_u32 s{sMode}, 0")
        a(f"s_cbranch_scc1 L_ci{u}")
        a("s_mov_b64 exec, 1")
        a(f"ds_add_rtn_u32 v{vCl}, v{vZ}, v{vI1} offset:{OFF_C}")
        a("s_mov_b64 exec, -1")
        a.label(f"L_ci{u}")
        if LATE and NGLOB:
            a(f"s_cmp_lg_u32 s{sMode}, 1")
            a(f"s_cbranch_scc1 L_cj{u}")
            a(f"s_mov_b32 s{sGc}, 1")
            a(f"s_atomic_add s{sGc}, s[{sCnt}:{sCnt+1}], 0 glc")
            a.label(f"L_cj{u}")
    def claim_mid():
        if not DYN:
            return
        uid[0] += 1
        u = uid[0]
        a(f"s_cmp_lg_u32 s{sMode}, 0")
        a(f"s_cbranch_scc1 L_{'cd' if LATE else 'cm'}{u}")
        a("s_waitcnt lgkmcnt(0)")
        a(f"v_readfirstlane_b32 s{sT}, v{vCl}")
        a(f"s_and_b32 s{sIdx}, s{sT}, 0xffff")
        a(f"s_lshl_b32 s{sNext}, s{sIdx}, {LTB}")
        a(f"s_add_u32 s{sNext}, s{sNext}, s{sWin}")
        a(f"s_cmp_lt_u32 s{sIdx}, {NLOC}")
        a(f"s_cbranch_scc1 L_cd{u}")
        a(f"s_mov_b32 s{sNext}, {INVALID}")
        a(f"s_cmp_ge_u32 s{sT}, 0x10000")
        a(f"s_cselect_b32 s{sMode}, {1 if NGLOB else 2}, 2")
        a.label(f"L_cm{u}")
        if NGLOB:
            a(f"s_cmp_lg_u32 s{sMode}, 1")
            a(f"s_cbranch_scc1 L_cd{u}")
            a(f"s_mov_b32 s{sGc}, 1")
            a(f"s_atomic_add s{sGc}, s[{sCnt}:{sCnt+1}], 0 glc")
        a.label(f"L_cd{u}")
    def claim_resolve(s):
        if not DYN:
            a(f"s_add_u32 s{sIdx}, s{sIdx}, {NW}")
            a(f"s_add_u32 s{sOff+s}, s{sOff+s}, {RING*NW*TB}")
            a(f"s_cmp_lt_u32 s{sIdx}, {WT}")
            a(f"s_cselect_b32 s{sOff+s}, s{sOff+s}, {INVALID}")
            return
        uid[0] += 1
        u = uid[0]
        if NGLOB:
            a(f"s_cmp_lg_u32 s{sMode}, 1")
            a(f"s_cbranch_scc1 L_cr{u}")
            a("s_waitcnt lgkmcnt(0)")
            a(f"s_and_b32 s{sT}, s{sGc}, 7")
            a(f"s_lshr_b32 s{sT2}, s{sGc}, 3")
            a(f"s_add_u32 s{sT2}, s{sT2}, {NLOC}")
            a(f"s_lshl_b32 s{sT}, s{sT}, 18")
            a(f"s_lshl_b32 s{sT2}, s{sT2}, {LTB}")
            a(f"s_add_u32 s{sNext}, s{sT}, s{sT2}")
            a(f"s_cmp_lt_u32 s{sGc}, {NGLOB}")
            a(f"s_cselect_b32 s{sNext}, s{sNext}, {INVALID}")
            a(f"s_cselect_b32 s{sMode}, 1, 2")
            a.label(f"L_cr{u}")
        a(f"s_mov_b32 s{sOff+s}, s{sNext}")
    def set_lds_ready():
        a(f"v_mov_b32 v{vX}, 0x10000")
        a("s_mov_b64 exec, 1")
        a(f"ds_add_u32 v{vZ}, v{vX} offset:{OFF_C}")
        a("s_mov_b64 exec, -1")
    if NGLOB:
        a(f"s_cmp_lg_u32 s{sRole}, 1")
        a("s_cbranch_scc1 L_nosig0")
        a("s_waitcnt vmcnt(0)")
        a(f"global_store_dword v{vDbg}, v{vI1}, s[36:37] sc1")
        set_lds_ready()
        a(f"s_mov_b32 s{sRole}, 0")
        a.label("L_nosig0")
    if not LATE:
        claim_issue()
        claim_mid()
    a.label("L_loop")
    for s in range(RING):
        a(f"s_cmp_eq_u32 s{sOff+s}, {INVALID}")
        a("s_cbranch_scc1 L_exit")
        for t in range(T4):
            a(f"s_waitcnt vmcnt({INFL-1-t})")
            a(f"v_mfma_f32_16x16x32_bf16 {v4(vD+4*t)}, {kb(s,t)}, {v4(vQ)}, 0")
        if LATE:
            claim_issue()
            a("s_nop 5")
        else:
            claim_resolve(s)
            ldk(s)
            claim_issue()
        if T4 == 2:
            a("s_nop 3")
        for q in range(4):
            if T4 == 2 and q:
                a("s_nop 0")
            for t in range(T4):
                op = "v_mul_f32_dpp" if q == 0 else "v_fmac_f32_dpp"
                a(f"{op} v{vS+t}, v{vD+4*t+q}, v{vC} quad_perm:[{q},{q},{q},{q}] row_mask:0xf bank_mask:0xf")
        a(f"v_max3_f32 v{vY}, v{vM}, v{vS}, v{vS+1}")
        for t in range(2, T4, 2):
            a(f"v_max3_f32 v{vY}, v{vY}, v{vS+t}, v{vS+t+1}")
        for sw in ("v_permlane16_swap_b32", "v_permlane32_swap_b32"):
            a(f"v_mov_b32 v{vX}, v{vY}")
            a("s_nop 1")
            a(f"{sw} v{vY}, v{vX}")
            a("s_nop 0")
            a(f"v_max_f32 v{vY}, v{vY}, v{vX}")
        a(f"v_sub_f32 v{vF}, v{vM}, v{vY}")
        for t in range(T4):
            a(f"v_sub_f32 v{vS+t}, v{vS+t}, v{vY}")
        a(f"v_exp_f32 v{vF}, v{vF}")
        for t in range(T4):
            a(f"v_exp_f32 v{vS+t}, v{vS+t}")
        a(f"v_mov_b32 v{vM}, v{vY}")
        for q in range(4):
            a(f"v_mul_f32 v{vO+q}, v{vF}, v{vO+q}")
        a(f"v_mul_f32 v{vLa}, v{vF}, v{vLa}")
        for t in range(T4):
            a(f"v_cvt_pk_bf16_f32 v{vS+t}, v{vS+t}, v{vS+t}")
        claim_mid()
        for t in range(T4):
            for q in range(4):
                a(f"v_and_b32 v{vPd+q}, v{vS+t}, v{vMask+q}")
            a("s_nop 1")
            a(f"v_mfma_f32_16x16x32_bf16 {v4(vLa)}, {v4(vOne)}, {v4(vPd)}, {v4(vLa)}")
            a(f"s_waitcnt vmcnt({INFL-1-t-(T4 if LATE else 0)})")
            a(f"v_mfma_f32_16x16x32_bf16 {v4(vO)}, {vb(s,t)}, {v4(vPd)}, {v4(vO)}")
        if LATE:
            claim_resolve(s)
            ldk(s)
        ldv(s)
    a(f"s_cmp_eq_u32 s{sRole}, 0")
    a("s_cbranch_scc1 L_loop")
    a(f"s_cmp_eq_u32 s{sRole}, 2")
    a("s_cbranch_scc1 L_role2")
    a(f"s_waitcnt vmcnt({INFL})")
    if NGLOB:
        a(f"v_readfirstlane_b32 s{sT}, v{vCnt}")
        a(f"s_cmp_eq_u32 s{sT}, 0")
        a(f"s_cbranch_scc1 L_fetch")
        set_lds_ready()
    else:
        a(f"global_store_dword v{vDbg}, v{vI1}, s[36:37] sc1")
    a(f"s_mov_b32 s{sRole}, 0")
    a("s_branch L_loop")
    a.label("L_role2")
    a(f"s_cmp_lt_u32 s{sIdx}, {CHK}")
    a("s_cbranch_scc1 L_loop")
    a.label("L_fetch")
    a(f"global_load_dword v{vCnt}, v{vDbg}, s[36:37] sc1")
    a(f"s_mov_b32 s{sRole}, {3 if NGLOB else 0}")
    a("s_branch L_loop")
    a.label("L_exit")
    a("s_nop 3")
    stamp(4)
    for q in range(4):
        a(f"ds_write_b32 v{vWa}, v{vO+q} offset:{32*q}")
    a("s_mov_b64 exec, 0x101")
    a(f"ds_write_b32 v{vWm}, v{vM} offset:{OFF_M}")
    a(f"ds_write_b32 v{vWm}, v{vLa} offset:{OFF_L}")
    a("s_mov_b64 exec, -1")
    a("s_waitcnt lgkmcnt(0)")
    a("s_barrier")
    a(f"s_cmp_lg_u32 s{sWv}, 0")
    a("s_cbranch_scc1 L_end")
    stamp(2)
    base = vTmp
    mb_ = base; lb = base + NW; ob = base + 2 * NW
    for j in range(NW // 4):
        a(f"ds_read_b128 {v4(mb_+4*j)}, v{vRm} offset:{OFF_M+16*j}")
    for j in range(NW // 4):
        a(f"ds_read_b128 {v4(lb+4*j)}, v{vRm} offset:{OFF_L+16*j}")
    for w in range(NW):
        a(f"ds_read_b128 {v4(ob+4*w)}, v{vRa} offset:{OW*w}")
    a(f"s_waitcnt lgkmcnt({min(15, NW + NW//4)})")
    a(f"v_max3_f32 v{vM}, v{mb_}, v{mb_+1}, v{mb_+2}")
    t = 3
    while t < NW:
        if t + 1 < NW:
            a(f"v_max3_f32 v{vM}, v{vM}, v{mb_+t}, v{mb_+t+1}"); t += 2
        else:
            a(f"v_max_f32 v{vM}, v{vM}, v{mb_+t}"); t += 1
    for w in range(NW):
        a(f"v_sub_f32 v{mb_+w}, v{mb_+w}, v{vM}")
    for w in range(NW):
        a(f"v_exp_f32 v{mb_+w}, v{mb_+w}")
    a(f"s_waitcnt lgkmcnt({min(15, NW)})")
    a(f"v_mul_f32 v{vLs}, v{mb_}, v{lb}")
    for w in range(1, NW):
        a(f"v_fmac_f32 v{vLs}, v{mb_+w}, v{lb+w}")
    for w in range(NW):
        a(f"s_waitcnt lgkmcnt({min(15, NW-1-w)})")
        for q in range(4):
            op = "v_mul_f32" if w == 0 else "v_fmac_f32"
            a(f"{op} v{vO+q}, v{mb_+w}, v{ob+4*w+q}")
    a(f"s_mov_b32 s{sGc}, 0x100000")
    a(f"s_cmp_eq_u32 s{sSp}, 0")
    a("s_cbranch_scc1 L_consumer")
    for q in range(4):
        a(f"v_min_u32 v{vO+q}, -2, v{vO+q}")
    a(f"v_min_u32 v{vM}, -2, v{vM}")
    a(f"v_min_u32 v{vLs}, -2, v{vLs}")
    a.label("L_cnt")
    a("s_waitcnt vmcnt(0)")
    a(f"v_cmp_eq_u32 vcc, 0, v{vCnt}")
    a("s_cbranch_vccz L_pub")
    a(f"global_load_dword v{vCnt}, v{vDbg}, s[36:37] sc1")
    a(f"s_sub_u32 s{sGc}, s{sGc}, 1")
    a("s_cbranch_scc0 L_cnt")
    a.label("L_pub")
    a(f"global_store_dwordx4 v{vR1}, {v4(vO)}, s[38:39] sc1")
    a(f"global_store_dwordx2 v{vR2}, v[{vM}:{vM+1}], s[38:39] offset:1024 sc1")
    a("s_branch L_fin")
    a.label("L_consumer")
    pO = base; pML = base + 28
    vA = base + 42; vB = base + 43; vMx = base + 44; vOut = base + 45
    a(f"v_add_u32 v{vA}, 8192, v{vR1}")
    a(f"v_add_u32 v{vB}, 8192, v{vR2}")
    a(f"v_lshl_add_u32 v{vOut}, v{vL}, 3, s{sG512}")
    a.label("L_poll")
    for s in range(1, 8):
        a(f"global_load_dwordx2 v[{pML+2*(s-1)}:{pML+2*(s-1)+1}], v{vR2 if s<4 else vB}, s[38:39] offset:{(s%4)*2048-4096+1024} sc1")
        a(f"global_load_dwordx4 {v4(pO+4*(s-1))}, v{vR1 if s<4 else vA}, s[38:39] offset:{(s%4)*2048-4096} sc1")
    a("s_waitcnt vmcnt(0)")
    a(f"v_max3_u32 v{vMx}, v{base}, v{base+1}, v{base+2}")
    t = 3
    while t < 42:
        if t + 1 < 42:
            a(f"v_max3_u32 v{vMx}, v{vMx}, v{base+t}, v{base+t+1}"); t += 2
        else:
            a(f"v_max_u32 v{vMx}, v{vMx}, v{base+t}"); t += 1
    a(f"v_cmp_eq_u32 vcc, -1, v{vMx}")
    a("s_cbranch_vccz L_go")
    a(f"s_sub_u32 s{sGc}, s{sGc}, 1")
    a("s_cbranch_scc0 L_poll")
    a.label("L_go")
    a(f"v_max3_f32 v{vMx}, v{vM}, v{pML}, v{pML+2}")
    a(f"v_max3_f32 v{vMx}, v{vMx}, v{pML+4}, v{pML+6}")
    a(f"v_max3_f32 v{vMx}, v{vMx}, v{pML+8}, v{pML+10}")
    a(f"v_max_f32 v{vMx}, v{vMx}, v{pML+12}")
    ms = [vM] + [pML + 2 * i for i in range(7)]
    os_ = [vO] + [pO + 4 * i for i in range(7)]
    for m in ms:
        a(f"v_sub_f32 v{m}, v{m}, v{vMx}")
    for m in ms:
        a(f"v_exp_f32 v{m}, v{m}")
    a("s_nop 0")
    a(f"v_mul_f32 v{vX}, v{ms[0]}, v{ms[0]+1}")
    for m in ms[1:]:
        a(f"v_fmac_f32 v{vX}, v{m}, v{m+1}")
    a(f"v_rcp_f32 v{vX}, v{vX}")
    for q in range(4):
        a(f"v_mul_f32 v{vO+q}, v{ms[0]}, v{vO+q}")
    for m, o in zip(ms[1:], os_[1:]):
        for q in range(4):
            a(f"v_fmac_f32 v{vO+q}, v{m}, v{o+q}")
    for q in range(4):
        a(f"v_mul_f32 v{vO+q}, v{vX}, v{vO+q}")
    a(f"v_cvt_pk_bf16_f32 v{vO}, v{vO}, v{vO+1}")
    a(f"v_cvt_pk_bf16_f32 v{vO+1}, v{vO+2}, v{vO+3}")
    a(f"global_store_dwordx2 v{vOut}, v[{vO}:{vO+1}], s[34:35]")
    a.label("L_fin")
    if stamps:
        stamp(3)
        a("s_waitcnt vmcnt(0)")
        stamp(5)
        a("s_getreg_b32 s52, hwreg(HW_REG_XCC_ID)")
        a("s_getreg_b32 s53, hwreg(HW_REG_HW_ID)")
        a("s_lshl_b32 s18, s2, 7")
        a("s_add_u32 s18, s18, 0x8000000")
        a(f"v_mov_b32 v{vX}, s18")
        for i in range(7):
            a(f"v_mov_b32 v{vTmp+2*i}, s{40+2*i}")
            a(f"v_mov_b32 v{vTmp+2*i+1}, s{41+2*i}")
        a("s_mov_b64 exec, 1")
        for i in range(7):
            a(f"global_store_dwordx2 v{vX}, v[{vTmp+2*i}:{vTmp+2*i+1}], s[38:39] offset:{8*i}")
    a.label("L_end")
    a("s_endpgm")
    out = a.text()
    if spin is not None:
        out += spin_kernel(spin)
    out += desc(main, total_decl, 72, accum)
    if spin is not None:
        out += desc("spin_kernel", 64, 32, 64)
    return out

if __name__ == "__main__":
    p = argparse.ArgumentParser()
    p.add_argument("--nw", type=int, default=4)
    p.add_argument("--t4", type=int, default=4)
    p.add_argument("--ring", type=int, default=2)
    p.add_argument("--nloc", type=int, default=48)
    p.add_argument("--dyn", type=int, default=0)
    p.add_argument("--late", action="store_true")
    p.add_argument("--abl", default="")
    p.add_argument("--flag", default="nt")
    p.add_argument("--xmap", default="rot")
    p.add_argument("--stamps", action="store_true")
    p.add_argument("--spin", default=None)
    p.add_argument("-o", default="-")
    x = p.parse_args()
    s = gen(x.nw, x.t4, x.flag, x.xmap, x.stamps, None if x.spin is None else tuple(int(t) for t in x.spin.split(",")),
            x.ring, x.nloc, x.dyn, x.late, None, x.abl)
    open(x.o, "w").write(s) if x.o != "-" else sys.stdout.write(s)
```

```python
import sys, math, argparse
from gen import Asm, desc, HDR, NAME, SCALE
from gen2 import spin_kernel

INVALID = 0x40000000
CNT_BASE = 0x100000

def gen(NW=4, T4=4, flag="nt", xmap="rot", stamps=False, spin=None, RING=2, NLOC=64, DYN=0, LATE=False, CHK=None, ABL=""):
    NWG = 256
    TB = T4 * 1024
    LTB = int(math.log2(TB))
    WT = 262144 // TB
    if DYN < 2:
        NLOC = WT
    assert RING * NW <= NLOC <= WT
    NGLOB = (WT - NLOC) * 8
    if CHK is None:
        CHK = NLOC // 2
    OW = 1408
    OFF_M = NW * OW
    NS = max(NW, 4)
    OFF_L = OFF_M + 2 * NS * 4
    OFF_C = OFF_L + 2 * NS * 4
    LDS = OFF_C + 16
    if NW < 4:
        LDS = 84000
    main = NAME + "_kernel"
    a = Asm()
    r = 1
    def alloc(n, align=1):
        nonlocal r
        r = (r + align - 1) // align * align
        b = r
        r += n
        return b
    vL = alloc(1); vW = alloc(1); vT = alloc(1); vC = alloc(1)
    vX = alloc(1); vY = alloc(1); vR1 = alloc(1); vR2 = alloc(1); vF = alloc(1)
    vKl = alloc(1); vVl = alloc(1); vA0 = alloc(1); vCnt = alloc(1); vDbg = alloc(1)
    vZ = alloc(1); vI1 = alloc(1); vCl = alloc(1); vWa = alloc(1); vWm = alloc(1); vRa = alloc(1); vRm = alloc(1)
    vM = alloc(2, 2); vLs = vM + 1
    vQ = alloc(4, 4); vMask = alloc(4, 4); vPd = alloc(4, 4); vO = alloc(4, 4); vLa = alloc(4, 4); vOne = alloc(4, 4)
    vS = alloc(T4, 4)
    vD = alloc(4 * T4, 4)
    vK = alloc(RING * 4 * T4, 4)
    vV = alloc(RING * 4 * T4, 4)
    vTmp = alloc(max(6 * NW, 48), 4)
    nv = r
    limit = {16: 128, 8: 256, 4: 512, 2: 256, 1: 256}[NW]
    assert nv <= min(limit, 256), (nv, limit)
    total_decl = limit
    accum = min(256, total_decl)
    def v4(b): return f"v[{b}:{b+3}]"
    def kb(s, t): return v4(vK + (s * T4 + t) * 4)
    def vb(s, t): return v4(vV + (s * T4 + t) * 4)
    sG, sSp, sWin, sG512, sWv = 16, 17, 18, 19, 20
    sRec, sRole, sMode, sNext, sGc, sT, sT2 = 23, 24, 25, 26, 27, 28, 29
    sIdx = 22
    sOff = 56
    sCnt = 60
    def ldk(s):
        a(f"v_add_u32 v{vA0}, s{sOff+s}, v{vKl}")
        for t in range(T4):
            so = "0" if t < 4 else "s30"
            a(f"buffer_load_dwordx4 {kb(s,t)}, v{vA0}, s[8:11], {so} offen offset:{(t%4)*1024} {flag}")
    def ldv(s):
        a(f"v_add_u32 v{vA0}, s{sOff+s}, v{vVl}")
        for t in range(T4):
            so = "0" if t < 4 else "s30"
            a(f"buffer_load_dwordx4 {vb(s,t)}, v{vA0}, s[12:15], {so} offen offset:{(t%4)*1024} {flag}")

    hdr = HDR
    if spin is not None:
        hdr += f"; @launch kernel={main} grid=({NWG},1,1) block=({NW*64},1,1) lds={LDS}\n"
        hdr += f"; @launch kernel=spin_kernel grid=(1,1,1) block=(64,1,1) lds=0\n"
    else:
        hdr += f"; @launch grid=({NWG},1,1) block=({NW*64},1,1) lds={LDS}\n"
    a.raw(hdr + '.amdgcn_target "amdgcn-amd-amdhsa--gfx950"\n.text')
    a.raw(f".globl {main}\n.p2align 8\n.type {main},@function")
    a.label(main)
    a("s_load_dwordx4 s[4:7], s[0:1], 0")
    a("s_load_dwordx8 s[32:39], s[0:1], 16")
    def stamp(i):
        if stamps:
            a(f"s_memrealtime s[{40+2*i}:{41+2*i}]")
            a("s_waitcnt lgkmcnt(0)")
    if stamps:
        a("s_memrealtime s[40:41]")
    a(f"s_cmp_ge_u32 s2, {NWG}")
    a("s_cbranch_scc1 L_end")
    a(f"v_lshrrev_b32 v{vW}, 6, v0")
    a(f"v_mov_b32 v{vZ}, 0")
    if DYN:
        a(f"v_mov_b32 v{vX}, {RING*NW}")
        a(f"ds_write_b32 v{vZ}, v{vX} offset:{OFF_C}")
    if xmap == "xcd":
        a(f"s_and_b32 s{sG}, s2, 7")
        a(f"s_lshl_b32 s{sG}, s{sG}, 2")
        a(f"s_bfe_u32 s{sSp}, s2, 0x20003")
        a(f"s_or_b32 s{sG}, s{sG}, s{sSp}")
        a(f"s_lshr_b32 s{sSp}, s2, 5")
    else:
        a(f"s_lshr_b32 s{sG}, s2, 3")
        a(f"s_add_u32 s{sSp}, s2, s{sG}")
        a(f"s_and_b32 s{sSp}, s{sSp}, 7")
    a(f"v_readfirstlane_b32 s{sWv}, v{vW}")
    a(f"s_lshl_b32 s21, s{sG}, 21")
    a(f"s_lshl_b32 s{sWin}, s{sSp}, 18")
    a(f"s_lshl_b32 s{sG512}, s{sG}, 9")
    a("s_mov_b32 s10, 0x200000")
    a("s_mov_b32 s11, 0x20000")
    a("s_mov_b32 s14, 0x200000")
    a("s_mov_b32 s15, 0x20000")
    if T4 > 4:
        a("s_movk_i32 s30, 0x1000")
    a(f"s_lshl_b32 s{sT}, s{sWv}, {LTB}")
    a(f"s_add_u32 s{sOff}, s{sWin}, s{sT}")
    for s in range(1, RING):
        a(f"s_add_u32 s{sOff+s}, s{sOff}, {s*NW*TB}")
    a(f"v_and_b32 v{vL}, 63, v0")
    a(f"v_lshrrev_b32 v{vX}, 4, v{vL}")
    a(f"v_and_b32 v{vY}, 3, v{vL}")
    a(f"v_lshlrev_b32 v{vY}, 4, v{vY}")
    a(f"v_lshl_add_u32 v{vX}, v{vX}, 6, v{vY}")
    a(f"v_bfe_u32 v{vY}, v{vL}, 2, 2")
    a(f"v_lshl_add_u32 v{vKl}, v{vY}, 8, v{vX}")
    a(f"v_lshlrev_b32 v{vVl}, 4, v{vL}")
    a(f"v_bfe_u32 v{vY}, v{vL}, 3, 1")
    a(f"v_lshl_add_u32 v{vX}, v{vY}, 8, v{vX}")
    a(f"v_add_u32 v{vX}, s{sG512}, v{vX}")
    a("s_waitcnt lgkmcnt(0)")
    if DYN:
        a("s_barrier")
    if stamps:
        a("s_memrealtime s[42:43]")
    a("s_add_u32 s8, s6, s21")
    a("s_addc_u32 s9, s7, 0")
    a(f"global_load_dwordx4 {v4(vQ)}, v{vX}, s[4:5]")
    a("s_add_u32 s12, s32, s21")
    a("s_addc_u32 s13, s33, 0")
    for s in range(RING):
        ldk(s); ldv(s)
    INFL = 2 * RING * T4
    a(f"s_lshl_b32 s{sRec}, s{sG}, 3")
    a(f"s_or_b32 s{sRec}, s{sRec}, s{sSp}")
    a(f"s_lshl_b32 s{sRec}, s{sRec}, 11")
    a(f"v_lshl_add_u32 v{vR1}, v{vL}, 4, s{sRec}")
    a(f"v_lshrrev_b32 v{vY}, 5, v{vL}")
    a(f"v_lshl_add_u32 v{vR2}, v{vY}, 3, s{sRec}")
    a(f"s_lshl_b32 s{sT2}, s{sG}, 12")
    a(f"s_add_u32 s{sT2}, s{sT2}, {CNT_BASE}")
    a(f"s_add_u32 s{sCnt}, s38, s{sT2}")
    a(f"s_addc_u32 s{sCnt+1}, s39, 0")
    a(f"s_lshl_b32 s{sT}, s{sG}, 2")
    a(f"v_mov_b32 v{vDbg}, s{sT}")
    a(f"v_mov_b32 v{vI1}, 1")
    a(f"v_mov_b32 v{vCnt}, 0")
    a(f"s_cmp_eq_u32 s{sSp}, 0")
    a(f"s_cselect_b32 s{sRole}, 1, 2")
    a(f"s_cmp_eq_u32 s{sWv}, 0")
    a(f"s_cselect_b32 s{sRole}, s{sRole}, 0")
    a(f"s_cmp_lg_u32 s{sRole}, 1")
    a("s_cbranch_scc1 L_noclear")
    for q in range(4):
        a(f"v_mov_b32 v{vPd+q}, -1")
    a(f"v_add_u32 v{vR1}, 4096, v{vR1}")
    a(f"v_add_u32 v{vR2}, 4096, v{vR2}")
    a(f"v_add_u32 v{vX}, 8192, v{vR1}")
    a(f"v_add_u32 v{vY}, 8192, v{vR2}")
    if "X" not in ABL:
        for s in range(1, 8):
            a(f"global_store_dwordx4 v{vR1 if s<4 else vX}, {v4(vPd)}, s[38:39] offset:{(s%4)*2048-4096} sc1")
            a(f"global_store_dwordx2 v{vR2 if s<4 else vY}, v[{vPd}:{vPd+1}], s[38:39] offset:{(s%4)*2048-4096+1024} sc1")
    if NGLOB:
        a(f"global_store_dword v{vZ}, v{vZ}, s[{sCnt}:{sCnt+1}] sc1")
    a.label("L_noclear")
    a(f"v_mov_b32 v{vC}, 0x{SCALE:08x}")
    a(f"v_and_b32 v{vX}, 1, v{vL}")
    a(f"v_lshlrev_b32 v{vX}, 4, v{vX}")
    a(f"v_mov_b32 v{vY}, 0xffff")
    a(f"v_lshlrev_b32 v{vX}, v{vX}, v{vY}")
    a(f"v_bfe_u32 v{vY}, v{vL}, 1, 2")
    for q in range(4):
        a(f"v_cmp_eq_u32 vcc, {q}, v{vY}")
        a("s_nop 1")
        a(f"v_cndmask_b32 v{vMask+q}, 0, v{vX}, vcc")
    for q in range(4):
        a(f"v_mov_b32 v{vO+q}, 0")
        a(f"v_mov_b32 v{vLa+q}, 0")
        a(f"v_mov_b32 v{vOne+q}, 0x3f803f80")
    a(f"v_mov_b32 v{vM}, 0xff7fffff")
    a(f"s_mov_b32 s{sMode}, 0")
    a(f"s_add_u32 s{sIdx}, s{sWv}, {(RING-1)*NW}")
    a(f"v_lshrrev_b32 v{vX}, 4, v{vL}")
    a(f"v_mul_u32_u24 v{vX}, 40, v{vX}")
    a(f"v_and_b32 v{vY}, 7, v{vL}")
    a(f"v_add_u32 v{vX}, v{vX}, v{vY}")
    a(f"v_bfe_u32 v{vY}, v{vL}, 3, 1")
    a(f"v_mul_u32_u24 v{vT}, 176, v{vY}")
    a(f"v_add_lshl_u32 v{vX}, v{vX}, v{vT}, 2")
    a(f"v_mul_u32_u24 v{vT}, {OW}, v{vW}")
    a(f"v_add_u32 v{vWa}, v{vX}, v{vT}")
    a(f"v_lshlrev_b32 v{vY}, {int(math.log2(NS*4))}, v{vY}")
    a(f"v_lshl_add_u32 v{vWm}, v{vW}, 2, v{vY}")
    a(f"v_bfe_u32 v{vX}, v{vL}, 3, 2")
    a(f"v_mul_u32_u24 v{vX}, 40, v{vX}")
    a(f"v_and_b32 v{vY}, 7, v{vL}")
    a(f"v_lshl_add_u32 v{vX}, v{vY}, 2, v{vX}")
    a(f"v_lshrrev_b32 v{vY}, 5, v{vL}")
    a(f"v_mul_u32_u24 v{vT}, 176, v{vY}")
    a(f"v_add_lshl_u32 v{vRa}, v{vX}, v{vT}, 2")
    a(f"v_lshlrev_b32 v{vRm}, {int(math.log2(NS*4))}, v{vY}")
    uid = [0]
    def claim_issue():
        if not DYN:
            return
        uid[0] += 1
        u = uid[0]
        a(f"s_cmp_lg_u32 s{sMode}, 0")
        a(f"s_cbranch_scc1 L_ci{u}")
        a("s_mov_b64 exec, 1")
        a(f"ds_add_rtn_u32 v{vCl}, v{vZ}, v{vI1} offset:{OFF_C}")
        a("s_mov_b64 exec, -1")
        a.label(f"L_ci{u}")
        if LATE and NGLOB:
            a(f"s_cmp_lg_u32 s{sMode}, 1")
            a(f"s_cbranch_scc1 L_cj{u}")
            a(f"s_mov_b32 s{sGc}, 1")
            a(f"s_atomic_add s{sGc}, s[{sCnt}:{sCnt+1}], 0 glc")
            a.label(f"L_cj{u}")
    def claim_mid():
        if not DYN:
            return
        uid[0] += 1
        u = uid[0]
        a(f"s_cmp_lg_u32 s{sMode}, 0")
        a(f"s_cbranch_scc1 L_{'cd' if LATE else 'cm'}{u}")
        a("s_waitcnt lgkmcnt(0)")
        a(f"v_readfirstlane_b32 s{sT}, v{vCl}")
        a(f"s_and_b32 s{sIdx}, s{sT}, 0xffff")
        a(f"s_lshl_b32 s{sNext}, s{sIdx}, {LTB}")
        a(f"s_add_u32 s{sNext}, s{sNext}, s{sWin}")
        a(f"s_cmp_lt_u32 s{sIdx}, {NLOC}")
        a(f"s_cbranch_scc1 L_cd{u}")
        a(f"s_mov_b32 s{sNext}, {INVALID}")
        a(f"s_cmp_ge_u32 s{sT}, 0x10000")
        a(f"s_cselect_b32 s{sMode}, {1 if NGLOB else 2}, 2")
        a.label(f"L_cm{u}")
        if NGLOB:
            a(f"s_cmp_lg_u32 s{sMode}, 1")
            a(f"s_cbranch_scc1 L_cd{u}")
            a(f"s_mov_b32 s{sGc}, 1")
            a(f"s_atomic_add s{sGc}, s[{sCnt}:{sCnt+1}], 0 glc")
        a.label(f"L_cd{u}")
    def claim_resolve(s):
        if not DYN:
            a(f"s_add_u32 s{sIdx}, s{sIdx}, {NW}")
            a(f"s_add_u32 s{sOff+s}, s{sOff+s}, {RING*NW*TB}")
            a(f"s_cmp_lt_u32 s{sIdx}, {WT}")
            a(f"s_cselect_b32 s{sOff+s}, s{sOff+s}, {INVALID}")
            return
        uid[0] += 1
        u = uid[0]
        if NGLOB:
            a(f"s_cmp_lg_u32 s{sMode}, 1")
            a(f"s_cbranch_scc1 L_cr{u}")
            a("s_waitcnt lgkmcnt(0)")
            a(f"s_and_b32 s{sT}, s{sGc}, 7")
            a(f"s_lshr_b32 s{sT2}, s{sGc}, 3")
            a(f"s_add_u32 s{sT2}, s{sT2}, {NLOC}")
            a(f"s_lshl_b32 s{sT}, s{sT}, 18")
            a(f"s_lshl_b32 s{sT2}, s{sT2}, {LTB}")
            a(f"s_add_u32 s{sNext}, s{sT}, s{sT2}")
            a(f"s_cmp_lt_u32 s{sGc}, {NGLOB}")
            a(f"s_cselect_b32 s{sNext}, s{sNext}, {INVALID}")
            a(f"s_cselect_b32 s{sMode}, 1, 2")
            a.label(f"L_cr{u}")
        a(f"s_mov_b32 s{sOff+s}, s{sNext}")
    def set_lds_ready():
        a(f"v_mov_b32 v{vX}, 0x10000")
        a("s_mov_b64 exec, 1")
        a(f"ds_add_u32 v{vZ}, v{vX} offset:{OFF_C}")
        a("s_mov_b64 exec, -1")
    if NGLOB:
        a(f"s_cmp_lg_u32 s{sRole}, 1")
        a("s_cbranch_scc1 L_nosig0")
        a("s_waitcnt vmcnt(0)")
        a(f"global_store_dword v{vDbg}, v{vI1}, s[36:37] sc1")
        set_lds_ready()
        a(f"s_mov_b32 s{sRole}, 0")
        a.label("L_nosig0")
    if not LATE:
        claim_issue()
        claim_mid()
    a.label("L_loop")
    for s in range(RING):
        a(f"s_cmp_eq_u32 s{sOff+s}, {INVALID}")
        a("s_cbranch_scc1 L_exit")
        for t in range(T4):
            a(f"s_waitcnt vmcnt({INFL-1-t})")
            a(f"v_mfma_f32_16x16x32_bf16 {v4(vD+4*t)}, {kb(s,t)}, {v4(vQ)}, 0")
        if LATE:
            claim_issue()
            a("s_nop 5")
        else:
            claim_resolve(s)
            ldk(s)
            claim_issue()
        if T4 == 2:
            a("s_nop 3")
        for q in range(4):
            if T4 == 2 and q:
                a("s_nop 0")
            for t in range(T4):
                op = "v_mul_f32_dpp" if q == 0 else "v_fmac_f32_dpp"
                a(f"{op} v{vS+t}, v{vD+4*t+q}, v{vC} quad_perm:[{q},{q},{q},{q}] row_mask:0xf bank_mask:0xf")
        a(f"v_max3_f32 v{vY}, v{vM}, v{vS}, v{vS+1}")
        for t in range(2, T4, 2):
            a(f"v_max3_f32 v{vY}, v{vY}, v{vS+t}, v{vS+t+1}")
        for sw in ("v_permlane16_swap_b32", "v_permlane32_swap_b32"):
            a(f"v_mov_b32 v{vX}, v{vY}")
            a("s_nop 1")
            a(f"{sw} v{vY}, v{vX}")
            a("s_nop 0")
            a(f"v_max_f32 v{vY}, v{vY}, v{vX}")
        a(f"v_sub_f32 v{vF}, v{vM}, v{vY}")
        for t in range(T4):
            a(f"v_sub_f32 v{vS+t}, v{vS+t}, v{vY}")
        a(f"v_exp_f32 v{vF}, v{vF}")
        for t in range(T4):
            a(f"v_exp_f32 v{vS+t}, v{vS+t}")
        a(f"v_mov_b32 v{vM}, v{vY}")
        for q in range(4):
            a(f"v_mul_f32 v{vO+q}, v{vF}, v{vO+q}")
        a(f"v_mul_f32 v{vLa}, v{vF}, v{vLa}")
        for t in range(T4):
            a(f"v_cvt_pk_bf16_f32 v{vS+t}, v{vS+t}, v{vS+t}")
        claim_mid()
        for t in range(T4):
            for q in range(4):
                a(f"v_and_b32 v{vPd+q}, v{vS+t}, v{vMask+q}")
            a("s_nop 1")
            a(f"v_mfma_f32_16x16x32_bf16 {v4(vLa)}, {v4(vOne)}, {v4(vPd)}, {v4(vLa)}")
            a(f"s_waitcnt vmcnt({INFL-1-t-(T4 if LATE else 0)})")
            a(f"v_mfma_f32_16x16x32_bf16 {v4(vO)}, {vb(s,t)}, {v4(vPd)}, {v4(vO)}")
        if LATE:
            claim_resolve(s)
            ldk(s)
        ldv(s)
    a(f"s_cmp_eq_u32 s{sRole}, 0")
    a("s_cbranch_scc1 L_loop")
    a(f"s_cmp_eq_u32 s{sRole}, 2")
    a("s_cbranch_scc1 L_role2")
    a(f"s_waitcnt vmcnt({INFL})")
    if NGLOB:
        a(f"v_readfirstlane_b32 s{sT}, v{vCnt}")
        a(f"s_cmp_eq_u32 s{sT}, 0")
        a(f"s_cbranch_scc1 L_fetch")
        set_lds_ready()
    else:
        a(f"global_store_dword v{vDbg}, v{vI1}, s[36:37] sc1")
    a(f"s_mov_b32 s{sRole}, 0")
    a("s_branch L_loop")
    a.label("L_role2")
    a(f"s_cmp_lt_u32 s{sIdx}, {CHK}")
    a("s_cbranch_scc1 L_loop")
    a.label("L_fetch")
    a(f"global_load_dword v{vCnt}, v{vDbg}, s[36:37] sc1")
    a(f"s_mov_b32 s{sRole}, {3 if NGLOB else 0}")
    a("s_branch L_loop")
    a.label("L_exit")
    a("s_nop 3")
    stamp(4)
    for q in range(4):
        a(f"ds_write_b32 v{vWa}, v{vO+q} offset:{32*q}")
    a("s_mov_b64 exec, 0x101")
    a(f"ds_write_b32 v{vWm}, v{vM} offset:{OFF_M}")
    a(f"ds_write_b32 v{vWm}, v{vLa} offset:{OFF_L}")
    a("s_mov_b64 exec, -1")
    a("s_waitcnt lgkmcnt(0)")
    a("s_barrier")
    a(f"s_cmp_lg_u32 s{sWv}, 0")
    a("s_cbranch_scc1 L_end")
    stamp(2)
    base = vTmp
    mb_ = base; lb = base + NS; ob = base + 2 * NS
    for j in range(NS // 4):
        a(f"ds_read_b128 {v4(mb_+4*j)}, v{vRm} offset:{OFF_M+16*j}")
    for j in range(NS // 4):
        a(f"ds_read_b128 {v4(lb+4*j)}, v{vRm} offset:{OFF_L+16*j}")
    for w in range(NW):
        a(f"ds_read_b128 {v4(ob+4*w)}, v{vRa} offset:{OW*w}")
    a(f"s_waitcnt lgkmcnt({min(15, NW + NS//4)})")
    if NW >= 3:
        a(f"v_max3_f32 v{vM}, v{mb_}, v{mb_+1}, v{mb_+2}")
    else:
        a(f"v_max_f32 v{vM}, v{mb_}, v{mb_+NW-1}")
    t = 3
    while t < NW:
        if t + 1 < NW:
            a(f"v_max3_f32 v{vM}, v{vM}, v{mb_+t}, v{mb_+t+1}"); t += 2
        else:
            a(f"v_max_f32 v{vM}, v{vM}, v{mb_+t}"); t += 1
    for w in range(NW):
        a(f"v_sub_f32 v{mb_+w}, v{mb_+w}, v{vM}")
    for w in range(NW):
        a(f"v_exp_f32 v{mb_+w}, v{mb_+w}")
    a(f"s_waitcnt lgkmcnt({min(15, NW)})")
    a("s_nop 0")
    a(f"v_mul_f32 v{vLs}, v{mb_}, v{lb}")
    for w in range(1, NW):
        a(f"v_fmac_f32 v{vLs}, v{mb_+w}, v{lb+w}")
    for w in range(NW):
        a(f"s_waitcnt lgkmcnt({min(15, NW-1-w)})")
        for q in range(4):
            op = "v_mul_f32" if w == 0 else "v_fmac_f32"
            a(f"{op} v{vO+q}, v{mb_+w}, v{ob+4*w+q}")
    a(f"s_mov_b32 s{sGc}, 0x100000")
    a(f"s_cmp_eq_u32 s{sSp}, 0")
    a("s_cbranch_scc1 L_consumer")
    for q in range(4):
        a(f"v_min_u32 v{vO+q}, -2, v{vO+q}")
    a(f"v_min_u32 v{vM}, -2, v{vM}")
    a(f"v_min_u32 v{vLs}, -2, v{vLs}")
    a.label("L_cnt")
    a("s_waitcnt vmcnt(0)")
    a(f"v_cmp_eq_u32 vcc, 0, v{vCnt}")
    a("s_cbranch_vccz L_pub")
    a(f"global_load_dword v{vCnt}, v{vDbg}, s[36:37] sc1")
    a(f"s_sub_u32 s{sGc}, s{sGc}, 1")
    a("s_cbranch_scc0 L_cnt")
    a.label("L_pub")
    a(f"global_store_dwordx4 v{vR1}, {v4(vO)}, s[38:39] sc1")
    a(f"global_store_dwordx2 v{vR2}, v[{vM}:{vM+1}], s[38:39] offset:1024 sc1")
    a("s_branch L_fin")
    a.label("L_consumer")
    pO = base; pML = base + 28
    vA = base + 42; vB = base + 43; vMx = base + 44; vOut = base + 45
    a(f"v_add_u32 v{vA}, 8192, v{vR1}")
    a(f"v_add_u32 v{vB}, 8192, v{vR2}")
    a(f"v_lshl_add_u32 v{vOut}, v{vL}, 3, s{sG512}")
    a.label("L_poll")
    for s in range(1, 8):
        a(f"global_load_dwordx2 v[{pML+2*(s-1)}:{pML+2*(s-1)+1}], v{vR2 if s<4 else vB}, s[38:39] offset:{(s%4)*2048-4096+1024} sc1")
        a(f"global_load_dwordx4 {v4(pO+4*(s-1))}, v{vR1 if s<4 else vA}, s[38:39] offset:{(s%4)*2048-4096} sc1")
    a("s_waitcnt vmcnt(0)")
    a(f"v_max3_u32 v{vMx}, v{base}, v{base+1}, v{base+2}")
    t = 3
    while t < 42:
        if t + 1 < 42:
            a(f"v_max3_u32 v{vMx}, v{vMx}, v{base+t}, v{base+t+1}"); t += 2
        else:
            a(f"v_max_u32 v{vMx}, v{vMx}, v{base+t}"); t += 1
    a(f"v_cmp_eq_u32 vcc, -1, v{vMx}")
    a("s_cbranch_vccz L_go")
    a(f"s_sub_u32 s{sGc}, s{sGc}, 1")
    a("s_cbranch_scc0 L_poll")
    a.label("L_go")
    a(f"v_max3_f32 v{vMx}, v{vM}, v{pML}, v{pML+2}")
    a(f"v_max3_f32 v{vMx}, v{vMx}, v{pML+4}, v{pML+6}")
    a(f"v_max3_f32 v{vMx}, v{vMx}, v{pML+8}, v{pML+10}")
    a(f"v_max_f32 v{vMx}, v{vMx}, v{pML+12}")
    ms = [vM] + [pML + 2 * i for i in range(7)]
    os_ = [vO] + [pO + 4 * i for i in range(7)]
    for m in ms:
        a(f"v_sub_f32 v{m}, v{m}, v{vMx}")
    for m in ms:
        a(f"v_exp_f32 v{m}, v{m}")
    a("s_nop 0")
    a(f"v_mul_f32 v{vX}, v{ms[0]}, v{ms[0]+1}")
    for m in ms[1:]:
        a(f"v_fmac_f32 v{vX}, v{m}, v{m+1}")
    a(f"v_rcp_f32 v{vX}, v{vX}")
    for q in range(4):
        a(f"v_mul_f32 v{vO+q}, v{ms[0]}, v{vO+q}")
    for m, o in zip(ms[1:], os_[1:]):
        for q in range(4):
            a(f"v_fmac_f32 v{vO+q}, v{m}, v{o+q}")
    for q in range(4):
        a(f"v_mul_f32 v{vO+q}, v{vX}, v{vO+q}")
    a(f"v_cvt_pk_bf16_f32 v{vO}, v{vO}, v{vO+1}")
    a(f"v_cvt_pk_bf16_f32 v{vO+1}, v{vO+2}, v{vO+3}")
    a(f"global_store_dwordx2 v{vOut}, v[{vO}:{vO+1}], s[34:35]")
    a.label("L_fin")
    if stamps:
        stamp(3)
        a("s_waitcnt vmcnt(0)")
        stamp(5)
        a("s_getreg_b32 s52, hwreg(HW_REG_XCC_ID)")
        a("s_getreg_b32 s53, hwreg(HW_REG_HW_ID)")
        a("s_lshl_b32 s18, s2, 7")
        a("s_add_u32 s18, s18, 0x8000000")
        a(f"v_mov_b32 v{vX}, s18")
        for i in range(7):
            a(f"v_mov_b32 v{vTmp+2*i}, s{40+2*i}")
            a(f"v_mov_b32 v{vTmp+2*i+1}, s{41+2*i}")
        a("s_mov_b64 exec, 1")
        for i in range(7):
            a(f"global_store_dwordx2 v{vX}, v[{vTmp+2*i}:{vTmp+2*i+1}], s[38:39] offset:{8*i}")
    a.label("L_end")
    a("s_endpgm")
    out = a.text()
    if spin is not None:
        out += spin_kernel(spin)
    out += desc(main, total_decl, 72, accum)
    if spin is not None:
        out += desc("spin_kernel", 64, 32, 64)
    return out

if __name__ == "__main__":
    p = argparse.ArgumentParser()
    p.add_argument("--nw", type=int, default=4)
    p.add_argument("--t4", type=int, default=4)
    p.add_argument("--ring", type=int, default=2)
    p.add_argument("--nloc", type=int, default=48)
    p.add_argument("--dyn", type=int, default=0)
    p.add_argument("--late", action="store_true")
    p.add_argument("--abl", default="")
    p.add_argument("--flag", default="nt")
    p.add_argument("--xmap", default="rot")
    p.add_argument("--stamps", action="store_true")
    p.add_argument("--spin", default=None)
    p.add_argument("-o", default="-")
    x = p.parse_args()
    s = gen(x.nw, x.t4, x.flag, x.xmap, x.stamps, None if x.spin is None else tuple(int(t) for t in x.spin.split(",")),
            x.ring, x.nloc, x.dyn, x.late, None, x.abl)
    open(x.o, "w").write(s) if x.o != "-" else sys.stdout.write(s)
```

```python
import sys, math, argparse
from gen import Asm, desc, HDR, NAME, SCALE
from gen2 import spin_kernel

def gen(NW=4, R=3, flag="nt", xmap="xcd", stamps=False, spin=None, NP=None, SLP=3, OUTF="", SKEW=0):
    NWG = 256
    TB = 4096
    NT = 64 // NW
    NTM = NT + SKEW
    NS = max(NW, 4)
    if NP is None:
        NP = NW
    OFF_O = NW * NTM * 1024
    OFF_M = OFF_O + NW * 1024
    OFF_L = OFF_M + 2 * NS * 4
    OFF_D = OFF_L + 2 * NS * 4
    LDS = max(OFF_D + 16, 84000)
    main = NAME + "_kernel"
    a = Asm()
    r = 1
    def alloc(n, align=1):
        nonlocal r
        r = (r + align - 1) // align * align
        b = r
        r += n
        return b
    vL = alloc(1); vW = alloc(1); vC = alloc(1)
    vX = alloc(1); vY = alloc(1); vR1 = alloc(1); vR2 = alloc(1); vR3 = alloc(1)
    vA0 = alloc(1); vVl = alloc(1); vCnt = alloc(1); vDbg = alloc(1); vI1 = alloc(1)
    vSa = alloc(1); vWa = alloc(1); vRa = alloc(1); vWm = alloc(1); vRm = alloc(1); vWs = alloc(1); vRs = alloc(1); vMs = alloc(1)
    vDa = alloc(1); vOut = alloc(1)
    vM = alloc(2, 2); vLs = vM + 1
    vQ = alloc(4, 4); vMask = alloc(4, 4); vPd = alloc(4, 4); vO = alloc(4, 4); vLa = alloc(4, 4); vOne = alloc(4, 4)
    vS = alloc(4, 4); vSn = alloc(4, 4)
    vD = alloc(16, 4)
    vB = alloc(R * 16, 4)
    vTmp = alloc(max(NS + 4 * NW, 44), 4)
    nv = r
    assert nv <= 256, nv
    total_decl = (nv + 7) // 8 * 8
    accum = (total_decl + 3) // 4 * 4
    def v4(b): return f"v[{b}:{b+3}]"
    def buf(s, t): return v4(vB + (s * 4 + t) * 4)
    sG, sSp, sG512, sWv = 16, 17, 19, 20
    sRec, sRole, sCnt, sGc, sT, sT2, sStep = 23, 24, 25, 27, 28, 29, 30
    def ld(s):
        for t in range(4):
            a(f"buffer_load_dwordx4 {buf(s,t)}, v{vA0}, s[8:11], 0 offen offset:{t*1024} {flag}")
        a(f"v_add_u32 v{vA0}, s{sStep}, v{vA0}")
    DPPM = "row_mask:0xf bank_mask:0xf"

    hdr = HDR
    if spin is not None:
        hdr += f"; @launch kernel={main} grid=({NWG},1,1) block=({NW*64},1,1) lds={LDS}\n"
        hdr += f"; @launch kernel=spin_kernel grid=(1,1,1) block=(64,1,1) lds=0\n"
    else:
        hdr += f"; @launch grid=({NWG},1,1) block=({NW*64},1,1) lds={LDS}\n"
    a.raw(hdr + '.amdgcn_target "amdgcn-amd-amdhsa--gfx950"\n.text')
    a.raw(f".globl {main}\n.p2align 8\n.type {main},@function")
    a.label(main)
    a("s_load_dwordx4 s[4:7], s[0:1], 0")
    a("s_load_dwordx8 s[32:39], s[0:1], 16")
    def stamp(i):
        if stamps:
            a(f"s_memrealtime s[{40+2*i}:{41+2*i}]")
            a("s_waitcnt lgkmcnt(0)")
    if stamps:
        a("s_memrealtime s[40:41]")
    a(f"s_cmp_ge_u32 s2, {NWG}")
    a("s_cbranch_scc1 L_end")
    if xmap == "xcd":
        a(f"s_and_b32 s{sG}, s2, 7")
        a(f"s_lshl_b32 s{sG}, s{sG}, 2")
        a(f"s_bfe_u32 s{sSp}, s2, 0x20003")
        a(f"s_or_b32 s{sG}, s{sG}, s{sSp}")
        a(f"s_lshr_b32 s{sSp}, s2, 5")
    else:
        a(f"s_lshr_b32 s{sG}, s2, 3")
        a(f"s_add_u32 s{sSp}, s2, s{sG}")
        a(f"s_and_b32 s{sSp}, s{sSp}, 7")
    a(f"s_lshl_b32 s21, s{sG}, 21")
    a(f"s_lshl_b32 s{sT}, s{sSp}, 18")
    a(f"s_or_b32 s21, s21, s{sT}")
    a(f"s_lshl_b32 s{sG512}, s{sG}, 9")
    a("s_mov_b32 s10, 0x40000")
    a("s_mov_b32 s11, 0x20000")
    a(f"s_mov_b32 s{sStep}, {NW*TB}")
    a(f"v_lshrrev_b32 v{vW}, 6, v0")
    a(f"v_and_b32 v{vL}, 63, v0")
    a(f"v_lshrrev_b32 v{vX}, 4, v{vL}")
    a(f"v_and_b32 v{vY}, 3, v{vL}")
    a(f"v_lshlrev_b32 v{vY}, 4, v{vY}")
    a(f"v_lshl_add_u32 v{vX}, v{vX}, 6, v{vY}")
    a(f"v_bfe_u32 v{vY}, v{vL}, 2, 2")
    a(f"v_lshl_add_u32 v{vA0}, v{vY}, 8, v{vX}")
    a(f"v_lshl_add_u32 v{vA0}, v{vW}, 12, v{vA0}")
    a(f"v_bfe_u32 v{vY}, v{vL}, 3, 1")
    a(f"v_lshl_add_u32 v{vX}, v{vY}, 8, v{vX}")
    a(f"v_add_u32 v{vX}, s{sG512}, v{vX}")
    a("s_waitcnt lgkmcnt(0)")
    if stamps:
        a("s_memrealtime s[42:43]")
    a("s_add_u32 s8, s6, s21")
    a("s_addc_u32 s9, s7, 0")
    a(f"global_load_dwordx4 {v4(vQ)}, v{vX}, s[4:5]")
    for s in range(R):
        ld(s)
    INFL = 4 * R
    LNS = int(math.log2(NS * 4))
    a(f"v_readfirstlane_b32 s{sWv}, v{vW}")
    a(f"v_lshlrev_b32 v{vRs}, {LNS}, v{vY}")
    a(f"v_add_u32 v{vRs}, {OFF_M}, v{vRs}")
    a(f"v_lshl_add_u32 v{vWs}, v{vW}, 2, v{vRs}")
    a("s_add_u32 s12, s32, s21")
    a("s_addc_u32 s13, s33, 0")
    a(f"v_lshlrev_b32 v{vVl}, 4, v{vL}")
    a(f"v_mul_u32_u24 v{vSa}, {NTM*1024}, v{vW}")
    a(f"v_add_u32 v{vSa}, v{vSa}, v{vVl}")
    a(f"v_add_u32 v{vRa}, {OFF_O}, v{vVl}")
    a(f"v_lshl_add_u32 v{vWa}, v{vW}, 10, v{vRa}")
    a(f"v_lshl_add_u32 v{vVl}, v{vW}, 12, v{vVl}")
    a(f"s_lshl_b32 s{sRec}, s{sG}, 3")
    a(f"s_or_b32 s{sRec}, s{sRec}, s{sSp}")
    a(f"s_lshl_b32 s{sRec}, s{sRec}, 11")
    a(f"v_lshl_add_u32 v{vR1}, v{vL}, 4, s{sRec}")
    a(f"v_lshrrev_b32 v{vY}, 5, v{vL}")
    a(f"v_lshl_add_u32 v{vR2}, v{vY}, 3, s{sRec}")
    a(f"v_lshlrev_b32 v{vRm}, {LNS}, v{vY}")
    a(f"v_add_u32 v{vRm}, {OFF_M}, v{vRm}")
    a(f"v_lshl_add_u32 v{vWm}, v{vW}, 2, v{vRm}")
    a(f"s_lshl_b32 s{sT}, s{sG}, 2")
    a(f"v_mov_b32 v{vDbg}, s{sT}")
    a(f"v_mov_b32 v{vI1}, 1")
    a(f"v_mov_b32 v{vCnt}, 0")
    a(f"v_mov_b32 v{vDa}, {OFF_D}")
    a(f"ds_write_b32 v{vDa}, v{vCnt}")
    a(f"s_or_b32 s{sRole}, s{sSp}, s{sWv}")
    a(f"v_add_u32 v{vR3}, 12288, v{vR1}")
    a(f"v_lshlrev_b32 v{vOut}, 8, v{vY}")
    a(f"v_and_b32 v{vX}, 15, v{vL}")
    a(f"v_lshl_add_u32 v{vOut}, v{vX}, 4, v{vOut}")
    a(f"v_bfe_u32 v{vX}, v{vL}, 4, 1")
    a(f"v_lshl_add_u32 v{vOut}, v{vX}, 3, v{vOut}")
    a(f"v_add_u32 v{vOut}, s{sG512}, v{vOut}")
    a(f"s_cmp_lg_u32 s{sSp}, 0")
    a("s_cbranch_scc1 L_noclear")
    a(f"v_add_u32 v{vR1}, 4096, v{vR1}")
    a(f"v_and_b32 v{vX}, 7, v{vL}")
    a(f"v_lshl_add_u32 v{vR2}, v{vX}, 11, v{vR2}")
    a(f"s_cmp_lg_u32 s{sRole}, 0")
    a("s_cbranch_scc1 L_noclear")
    for q in range(4):
        a(f"v_mov_b32 v{vPd+q}, -1")
    a(f"global_store_dwordx2 v{vR2}, v[{vPd}:{vPd+1}], s[38:39] offset:1024 sc1")
    for s in range(1, 8):
        a(f"global_store_dwordx4 v{vR1 if s<4 else vR3}, {v4(vPd)}, s[38:39] offset:{(s%4)*2048-4096} sc1")
    a.label("L_noclear")
    a(f"v_mov_b32 v{vC}, 0x{SCALE:08x}")
    a(f"v_and_b32 v{vX}, 1, v{vL}")
    a(f"v_lshlrev_b32 v{vX}, 4, v{vX}")
    a(f"v_mov_b32 v{vY}, 0xffff")
    a(f"v_lshlrev_b32 v{vX}, v{vX}, v{vY}")
    a(f"v_bfe_u32 v{vY}, v{vL}, 1, 2")
    for q in range(4):
        a(f"v_cmp_eq_u32 vcc, {q}, v{vY}")
        a("s_nop 1")
        a(f"v_cndmask_b32 v{vMask+q}, 0, v{vX}, vcc")
    for q in range(4):
        a(f"v_mov_b32 v{vO+q}, 0")
        a(f"v_mov_b32 v{vLa+q}, 0")
        a(f"v_mov_b32 v{vOne+q}, 0x3f803f80")
    a(f"v_mov_b32 v{vMs}, 0xff7fffff")
    a(f"s_mov_b32 s{sCnt}, 0")
    a.label("L_k")
    for s in range(R):
        for t in range(4):
            a(f"s_waitcnt vmcnt({INFL-1-t})")
            a(f"v_mfma_f32_16x16x32_bf16 {v4(vD+4*t)}, {buf(s,t)}, {v4(vQ)}, 0")
        if (NT - R) % R == s:
            a(f"s_cmp_lg_u32 s{sCnt}, {NT-R}")
            a(f"s_cbranch_scc1 L_ksw")
            a("s_mov_b64 s[8:9], s[12:13]")
            a(f"v_mov_b32 v{vA0}, v{vVl}")
            a.label("L_ksw")
        ld(s)
        a("s_nop 0")
        for q in range(4):
            for t in range(4):
                op = "v_mul_f32_dpp" if q == 0 else "v_fmac_f32_dpp"
                a(f"{op} v{vS+t}, v{vD+4*t+q}, v{vC} quad_perm:[{q},{q},{q},{q}] {DPPM}")
        a(f"v_max3_f32 v{vMs}, v{vMs}, v{vS}, v{vS+1}")
        a(f"ds_write_b128 v{vSa}, {v4(vS)}")
        a(f"v_max3_f32 v{vMs}, v{vMs}, v{vS+2}, v{vS+3}")
        a(f"v_add_u32 v{vSa}, 1024, v{vSa}")
        a(f"s_add_u32 s{sCnt}, s{sCnt}, 1")
        if (NT - 1) % R == s:
            a(f"s_cmp_eq_u32 s{sCnt}, {NT}")
            a("s_cbranch_scc1 L_kx")
    a(f"s_cmp_lg_u32 s{sRole}, 0")
    a("s_cbranch_scc1 L_k")
    a(f"s_waitcnt vmcnt({INFL})")
    a(f"global_store_dword v{vDbg}, v{vI1}, s[36:37] sc1")
    a(f"s_mov_b32 s{sRole}, 1")
    a("s_branch L_k")
    a.label("L_kx")
    a(f"v_subrev_u32 v{vSa}, {NT*1024}, v{vSa}")
    for sw in ("v_permlane16_swap_b32", "v_permlane32_swap_b32"):
        a(f"v_mov_b32 v{vX}, v{vMs}")
        a("s_nop 1")
        a(f"{sw} v{vMs}, v{vX}")
        a("s_nop 0")
        a(f"v_max_f32 v{vMs}, v{vMs}, v{vX}")
    a(f"ds_write_b32 v{vWs}, v{vMs}")
    a(f"s_cmp_lg_u32 s{sWv}, 0")
    a("s_cbranch_scc1 L_nof")
    a(f"global_load_dword v{vCnt}, v{vDbg}, s[36:37] sc1")
    a.label("L_nof")
    a("s_waitcnt lgkmcnt(0)")
    if NW > 1:
        a("s_barrier")
    for j in range(NS // 4):
        a(f"ds_read_b128 {v4(vD+4*j)}, v{vRs} offset:{16*j}")
    for j in range(NS // 4):
        a(f"ds_read_b128 {v4(vD+8+4*j)}, v{vRm} offset:{16*j}")
    a(f"ds_read_b128 {v4(vSn)}, v{vSa}")
    a("s_waitcnt lgkmcnt(1)")
    def maxn(dst, b):
        if NW == 1:
            a(f"v_mov_b32 v{dst}, v{b}")
        elif NW == 2:
            a(f"v_max_f32 v{dst}, v{b}, v{b+1}")
        else:
            a(f"v_max3_f32 v{dst}, v{b}, v{b+1}, v{b+2}")
            t = 3
            while t < NW:
                if t + 1 < NW:
                    a(f"v_max3_f32 v{dst}, v{dst}, v{b+t}, v{b+t+1}"); t += 2
                else:
                    a(f"v_max_f32 v{dst}, v{dst}, v{b+t}"); t += 1
    maxn(vMs, vD)
    maxn(vM, vD + 8)
    a(f"v_min_u32 v{vM}, -2, v{vM}")
    a(f"s_mov_b32 s{sCnt}, {NT}")
    s0 = NT % R
    a.label("L_v")
    for j in range(R):
        s = (s0 + j) % R
        a("s_waitcnt lgkmcnt(0)")
        for t in range(4):
            a(f"v_sub_f32 v{vS+t}, v{vSn+t}, v{vMs}")
        a(f"ds_read_b128 {v4(vSn)}, v{vSa} offset:1024")
        a(f"v_add_u32 v{vSa}, 1024, v{vSa}")
        for t in range(4):
            a(f"v_exp_f32 v{vS+t}, v{vS+t}")
        a(f"s_sub_u32 s{sCnt}, s{sCnt}, 1")
        for t in range(4):
            a(f"v_cvt_pk_bf16_f32 v{vS+t}, v{vS+t}, v{vS+t}")
        for t in range(4):
            for q in range(4):
                a(f"v_and_b32 v{vPd+q}, v{vS+t}, v{vMask+q}")
            a("s_nop 1")
            a(f"v_mfma_f32_16x16x32_bf16 {v4(vLa)}, {v4(vPd)}, {v4(vOne)}, {v4(vLa)}")
            a(f"s_waitcnt vmcnt({INFL-1-t})")
            a(f"v_mfma_f32_16x16x32_bf16 {v4(vO)}, {v4(vPd)}, {buf(s,t)}, {v4(vO)}")
        if (NT - 1) % R == j:
            a(f"s_cmp_eq_u32 s{sCnt}, 0")
            a("s_cbranch_scc1 L_vx")
        ld(s)
    a("s_branch L_v")
    a.label("L_vx")
    base = vTmp
    if NW > 1:
        a("s_nop 3")
        a(f"ds_write_b32 v{vWm}, v{vLa} offset:{OFF_L-OFF_M}")
        a("s_nop 0")
        stamp(4)
        a(f"ds_write_b128 v{vWa}, {v4(vO)}")
        a(f"s_cmp_eq_u32 s{sSp}, 0")
        a(f"s_cselect_b32 s{sT}, {NP}, 1")
        a(f"s_cmp_ge_u32 s{sWv}, s{sT}")
        a("s_waitcnt lgkmcnt(0)")
        a("s_barrier")
        a("s_cbranch_scc1 L_end")
        stamp(2)
        lb = base; ob = base + NS
        for w in range(NW):
            a(f"ds_read_b128 {v4(ob+4*w)}, v{vRa} offset:{1024*w}")
        for j in range(NS // 4):
            a(f"ds_read_b128 {v4(lb+4*j)}, v{vRm} offset:{OFF_L-OFF_M+16*j}")
        for w in range(1, NW):
            a(f"s_waitcnt lgkmcnt({NW-1-w+NS//4})")
            src = ob if w == 1 else vO
            a(f"v_pk_add_f32 v[{vO}:{vO+1}], v[{src}:{src+1}], v[{ob+4*w}:{ob+4*w+1}]")
            a(f"v_pk_add_f32 v[{vO+2}:{vO+3}], v[{src+2}:{src+3}], v[{ob+4*w+2}:{ob+4*w+3}]")
        a("s_waitcnt lgkmcnt(0)")
        a(f"v_add_f32 v{vLs}, v{lb}, v{lb+1}")
        for w in range(2, NW):
            a(f"v_add_f32 v{vLs}, v{vLs}, v{lb+w}")
    else:
        a("s_nop 5")
        stamp(4)
        stamp(2)
        a(f"v_mov_b32 v{vLs}, v{vLa}")
    a(f"s_cmp_eq_u32 s{sSp}, 0")
    a("s_cbranch_scc1 L_consumer")
    a(f"v_cmp_eq_u32 vcc, 0, v{vCnt}")
    for q in range(4):
        a(f"v_min_u32 v{vO+q}, -2, v{vO+q}")
    a(f"v_min_u32 v{vLs}, -2, v{vLs}")
    a("s_cbranch_vccnz L_cnt")
    a.label("L_pub")
    a(f"global_store_dwordx4 v{vR1}, {v4(vO)}, s[38:39] sc1")
    a(f"global_store_dwordx2 v{vR2}, v[{vM}:{vM+1}], s[38:39] offset:1024 sc1")
    a("s_branch L_fin" if stamps else "s_endpgm")
    a.label("L_cnt")
    a(f"s_mov_b32 s{sGc}, 0x100000")
    a.label("L_cnt2")
    a(f"global_load_dword v{vCnt}, v{vDbg}, s[36:37] sc1")
    a("s_waitcnt vmcnt(0)")
    a(f"v_cmp_eq_u32 vcc, 0, v{vCnt}")
    a("s_cbranch_vccz L_pub")
    a(f"s_sub_u32 s{sGc}, s{sGc}, 1")
    a("s_cbranch_scc0 L_cnt2")
    a("s_branch L_pub")
    a.label("L_consumer")
    pO = base; pML = base + 28; vAcc = base + 32; vMx = base + 36; vG = base + 37; vT2 = base + 38; vDn = base + 39
    a(f"s_mov_b32 s{sGc}, 0x100000")
    a("s_mov_b32 s56, 0x01010101")
    a("s_mov_b32 s57, 0x01010101")
    a(f"v_min_u32 v{vLs}, -2, v{vLs}")
    if NP > 1:
        a(f"s_mov_b32 s{sT}, s{sWv}")
        a.label("L_stag")
        a(f"s_sub_u32 s{sT}, s{sT}, 1")
        a("s_cbranch_scc1 L_poll")
        a(f"s_sleep {SLP}")
        a("s_branch L_stag")
    a.label("L_poll")
    a(f"global_load_dwordx2 v[{pML}:{pML+1}], v{vR2}, s[38:39] offset:1024 sc1")
    for s in range(1, 8):
        a(f"global_load_dwordx4 {v4(pO+4*(s-1))}, v{vR1 if s<4 else vR3}, s[38:39] offset:{(s%4)*2048-4096} sc1")
    a("s_waitcnt vmcnt(7)")
    if NP > 1:
        a(f"ds_read_b32 v{vDn}, v{vDa}")
    a(f"v_cndmask_b32 v{pML}, v{pML}, v{vM}, s[56:57]")
    a(f"v_cndmask_b32 v{pML+1}, v{pML+1}, v{vLs}, s[56:57]")
    a(f"v_max_u32 v{vMx}, v{pML}, v{pML+1}")
    a(f"v_max_f32_dpp v{vG}, v{pML}, v{pML} quad_perm:[1,0,3,2] {DPPM}")
    a("s_nop 1")
    a(f"v_max_f32_dpp v{vG}, v{vG}, v{vG} quad_perm:[2,3,0,1] {DPPM}")
    a("s_nop 1")
    a(f"v_max_f32_dpp v{vG}, v{vG}, v{vG} row_half_mirror {DPPM}")
    a(f"v_sub_f32 v{vG}, v{pML}, v{vG}")
    a(f"v_exp_f32 v{vG}, v{vG}")
    a("s_nop 0")
    a(f"v_mul_f32 v{vT2}, v{vG}, v{pML+1}")
    a("s_nop 1")
    a(f"v_add_f32_dpp v{vT2}, v{vT2}, v{vT2} quad_perm:[1,0,3,2] {DPPM}")
    a("s_nop 1")
    a(f"v_add_f32_dpp v{vT2}, v{vT2}, v{vT2} quad_perm:[2,3,0,1] {DPPM}")
    a("s_nop 1")
    a(f"v_add_f32_dpp v{vT2}, v{vT2}, v{vT2} row_half_mirror {DPPM}")
    a(f"v_rcp_f32 v{vT2}, v{vT2}")
    a("s_nop 0")
    a(f"v_mul_f32 v{vG}, v{vG}, v{vT2}")
    a("s_nop 1")
    for q in range(4):
        a(f"v_mul_f32_dpp v{vAcc+q}, v{vG}, v{vO+q} row_newbcast:0 {DPPM}")
    for s in range(1, 8):
        b = pO + 4 * (s - 1)
        a(f"s_waitcnt vmcnt({7-s})")
        for q in range(4):
            a(f"v_fmac_f32_dpp v{vAcc+q}, v{vG}, v{b+q} row_newbcast:{s} {DPPM}")
        a(f"v_max3_u32 v{vMx}, v{vMx}, v{b}, v{b+1}")
        a(f"v_max3_u32 v{vMx}, v{vMx}, v{b+2}, v{b+3}")
    a(f"v_cvt_pk_bf16_f32 v{vAcc}, v{vAcc}, v{vAcc+1}")
    a(f"v_cvt_pk_bf16_f32 v{vAcc+1}, v{vAcc+2}, v{vAcc+3}")
    if NP > 1:
        a("s_waitcnt lgkmcnt(0)")
        a(f"v_cmp_ne_u32 vcc, 0, v{vDn}")
        a("s_cbranch_vccnz L_end")
    a(f"v_cmp_eq_u32 vcc, -1, v{vMx}")
    a("s_cbranch_vccz L_go")
    a(f"s_sub_u32 s{sGc}, s{sGc}, 1")
    a("s_cbranch_scc0 L_poll")
    a.label("L_go")
    a(f"global_store_dwordx2 v{vOut}, v[{vAcc}:{vAcc+1}], s[34:35] {OUTF}")
    if NP > 1:
        a(f"ds_write_b32 v{vDa}, v{vI1}")
    a.label("L_fin")
    if stamps:
        stamp(3)
        a("s_waitcnt vmcnt(0)")
        stamp(5)
        a("s_getreg_b32 s52, hwreg(HW_REG_XCC_ID)")
        a("s_getreg_b32 s53, hwreg(HW_REG_HW_ID)")
        a("s_lshl_b32 s18, s2, 7")
        a("s_add_u32 s18, s18, 0x8000000")
        a(f"v_mov_b32 v{vX}, s18")
        for i in range(7):
            a(f"v_mov_b32 v{vTmp+2*i}, s{40+2*i}")
            a(f"v_mov_b32 v{vTmp+2*i+1}, s{41+2*i}")
        a("s_mov_b64 exec, 1")
        for i in range(7):
            a(f"global_store_dwordx2 v{vX}, v[{vTmp+2*i}:{vTmp+2*i+1}], s[38:39] offset:{8*i}")
    a.label("L_end")
    a("s_endpgm")
    out = a.text()
    if spin is not None:
        out += spin_kernel(spin)
    out += desc(main, total_decl, 72, accum)
    if spin is not None:
        out += desc("spin_kernel", 64, 32, 64)
    return out

if __name__ == "__main__":
    p = argparse.ArgumentParser()
    p.add_argument("--nw", type=int, default=4)
    p.add_argument("--r", type=int, default=3)
    p.add_argument("--np", type=int, default=None)
    p.add_argument("--slp", type=int, default=3)
    p.add_argument("--outf", default="")
    p.add_argument("--flag", default="nt")
    p.add_argument("--xmap", default="xcd")
    p.add_argument("--stamps", action="store_true")
    p.add_argument("--spin", default=None)
    p.add_argument("-o", default="-")
    x = p.parse_args()
    s = gen(x.nw, x.r, x.flag, x.xmap, x.stamps, None if x.spin is None else tuple(int(t) for t in x.spin.split(",")), x.np, x.slp, x.outf)
    open(x.o, "w").write(s) if x.o != "-" else sys.stdout.write(s)
```

```python
import sys, math, argparse
from gen import Asm, desc, HDR, NAME, SCALE
from gen2 import spin_kernel

AREA_A = 0x80000

def gen(NW=4, R=3, flag="nt", xmap="xcd", stamps=False, spin=None, TRIG=2, NA=24, DUAL=True, OUTF="", PSLP=0):
    NWG = 256
    TB = 4096
    NT = 64 // NW
    NS = max(NW, 4)
    OFF_O = 65536
    OFF_M = OFF_O + NW * 1024
    OFF_L = OFF_M + 2 * NS * 4
    OFF_D = OFF_L + 2 * NS * 4
    LDS = max(OFF_D + 16, 84000)
    main = NAME + "_kernel"
    a = Asm()
    r = 1
    def alloc(n, align=1):
        nonlocal r
        r = (r + align - 1) // align * align
        b = r
        r += n
        return b
    vL = alloc(1); vW = alloc(1); vC = alloc(1)
    vX = alloc(1); vY = alloc(1); vR1 = alloc(1); vR2 = alloc(1); vR3 = alloc(1)
    vA0 = alloc(1); vVl = alloc(1); vCnt = alloc(1); vDbg = alloc(1); vI1 = alloc(1)
    vSa = alloc(1); vWa = alloc(1); vRa = alloc(1); vWm = alloc(1); vRm = alloc(1); vWs = alloc(1); vRs = alloc(1); vMs = alloc(1)
    vDa = alloc(1); vOut = alloc(1); vArr = alloc(1)
    vM = alloc(2, 2); vLs = vM + 1
    vQ = alloc(4, 4); vMask = alloc(4, 4); vPd = alloc(4, 4); vO = alloc(4, 4); vLa = alloc(4, 4); vOne = alloc(4, 4)
    vS = alloc(4, 4); vSn = alloc(4, 4)
    vD = alloc(16, 4)
    vB = alloc(R * 16, 4)
    vTmp = alloc(max(NS + 4 * NW, 44), 4)
    nv = r
    assert nv <= 256, nv
    total_decl = (nv + 7) // 8 * 8
    accum = (total_decl + 3) // 4 * 4
    def v4(b): return f"v[{b}:{b+3}]"
    def buf(s, t): return v4(vB + (s * 4 + t) * 4)
    sG, sSp, sG512, sWv = 16, 17, 19, 20
    sRec, sTrig, sCnt, sGc, sT, sT2, sStep = 23, 24, 25, 27, 28, 29, 30
    def ld(s):
        for t in range(4):
            a(f"buffer_load_dwordx4 {buf(s,t)}, v{vA0}, s[8:11], 0 offen offset:{t*1024} {flag}")
        a(f"v_add_u32 v{vA0}, s{sStep}, v{vA0}")
    DPPM = "row_mask:0xf bank_mask:0xf"
    NTH = (NW + 1) * 64
    hdr = HDR
    if spin is not None:
        hdr += f"; @launch kernel={main} grid=({NWG},1,1) block=({NTH},1,1) lds={LDS}\n"
        hdr += f"; @launch kernel=spin_kernel grid=(1,1,1) block=(64,1,1) lds=0\n"
    else:
        hdr += f"; @launch grid=({NWG},1,1) block=({NTH},1,1) lds={LDS}\n"
    a.raw(hdr + '.amdgcn_target "amdgcn-amd-amdhsa--gfx950"\n.text')
    a.raw(f".globl {main}\n.p2align 8\n.type {main},@function")
    a.label(main)
    a("s_load_dwordx4 s[4:7], s[0:1], 0")
    a("s_load_dwordx8 s[32:39], s[0:1], 16")
    def stamp(i):
        if stamps:
            a(f"s_memrealtime s[{40+2*i}:{41+2*i}]")
            a("s_waitcnt lgkmcnt(0)")
    def stamp_out(slot0, idx):
        a("s_getreg_b32 s52, hwreg(HW_REG_XCC_ID)")
        a("s_getreg_b32 s53, hwreg(HW_REG_HW_ID)")
        a("s_lshl_b32 s18, s2, 7")
        a("s_add_u32 s18, s18, 0x8000000")
        a(f"v_mov_b32 v{vX}, s18")
        for i in idx:
            a(f"v_mov_b32 v{vTmp+2*i}, s{40+2*i}")
            a(f"v_mov_b32 v{vTmp+2*i+1}, s{41+2*i}")
        a("s_mov_b64 exec, 1")
        for i in idx:
            a(f"global_store_dwordx2 v{vX}, v[{vTmp+2*i}:{vTmp+2*i+1}], s[38:39] offset:{8*(i+slot0)}")
    if stamps:
        a("s_memrealtime s[40:41]")
    a(f"s_cmp_ge_u32 s2, {NWG}")
    a("s_cbranch_scc1 L_end")
    a(f"v_lshrrev_b32 v{vW}, 6, v0")
    if xmap == "xcd":
        a(f"s_and_b32 s{sG}, s2, 7")
        a(f"s_lshl_b32 s{sG}, s{sG}, 2")
        a(f"s_bfe_u32 s{sSp}, s2, 0x20003")
        a(f"s_or_b32 s{sG}, s{sG}, s{sSp}")
        a(f"s_lshr_b32 s{sSp}, s2, 5")
    else:
        a(f"s_lshr_b32 s{sG}, s2, 3")
        a(f"s_add_u32 s{sSp}, s2, s{sG}")
        a(f"s_and_b32 s{sSp}, s{sSp}, 7")
    a(f"v_readfirstlane_b32 s{sWv}, v{vW}")
    a(f"s_lshl_b32 s21, s{sG}, 21")
    a(f"s_lshl_b32 s{sT}, s{sSp}, 18")
    a(f"s_or_b32 s21, s21, s{sT}")
    a(f"s_lshl_b32 s{sG512}, s{sG}, 9")
    a("s_mov_b32 s10, 0x40000")
    a("s_mov_b32 s11, 0x20000")
    a(f"s_mov_b32 s{sStep}, {NW*TB}")
    a(f"v_and_b32 v{vL}, 63, v0")
    a(f"v_lshrrev_b32 v{vX}, 4, v{vL}")
    a(f"v_and_b32 v{vY}, 3, v{vL}")
    a(f"v_lshlrev_b32 v{vY}, 4, v{vY}")
    a(f"v_lshl_add_u32 v{vX}, v{vX}, 6, v{vY}")
    a(f"v_bfe_u32 v{vY}, v{vL}, 2, 2")
    a(f"v_lshl_add_u32 v{vA0}, v{vY}, 8, v{vX}")
    a(f"v_lshl_add_u32 v{vA0}, v{vW}, 12, v{vA0}")
    a(f"v_bfe_u32 v{vY}, v{vL}, 3, 1")
    a(f"v_lshl_add_u32 v{vX}, v{vY}, 8, v{vX}")
    a(f"v_add_u32 v{vX}, s{sG512}, v{vX}")
    a(f"s_cmp_eq_u32 s{sWv}, {NW}")
    a("s_waitcnt lgkmcnt(0)")
    a("s_cbranch_scc1 L_helper")
    if stamps:
        a("s_memrealtime s[42:43]")
    a("s_add_u32 s8, s6, s21")
    a("s_addc_u32 s9, s7, 0")
    a(f"global_load_dwordx4 {v4(vQ)}, v{vX}, s[4:5]")
    for s in range(R):
        ld(s)
    INFL = 4 * R
    LNS = int(math.log2(NS * 4))
    a(f"v_lshlrev_b32 v{vRs}, {LNS}, v{vY}")
    a(f"v_add_u32 v{vRs}, {OFF_M}, v{vRs}")
    a(f"v_lshl_add_u32 v{vWs}, v{vW}, 2, v{vRs}")
    a("s_add_u32 s12, s32, s21")
    a("s_addc_u32 s13, s33, 0")
    a(f"v_lshlrev_b32 v{vVl}, 4, v{vL}")
    a(f"v_lshl_add_u32 v{vSa}, v{vW}, {int(math.log2(NT*1024))}, v{vVl}")
    a(f"v_add_u32 v{vRa}, {OFF_O}, v{vVl}")
    a(f"v_lshl_add_u32 v{vWa}, v{vW}, 10, v{vRa}")
    a(f"v_lshl_add_u32 v{vVl}, v{vW}, 12, v{vVl}")
    a(f"s_lshl_b32 s{sRec}, s{sG}, 3")
    a(f"s_or_b32 s{sRec}, s{sRec}, s{sSp}")
    a(f"s_lshl_b32 s{sRec}, s{sRec}, 11")
    a(f"v_lshl_add_u32 v{vR1}, v{vL}, 4, s{sRec}")
    a(f"v_lshrrev_b32 v{vY}, 5, v{vL}")
    a(f"v_lshl_add_u32 v{vR2}, v{vY}, 3, s{sRec}")
    a(f"v_lshlrev_b32 v{vRm}, {LNS}, v{vY}")
    a(f"v_add_u32 v{vRm}, {OFF_M}, v{vRm}")
    a(f"v_lshl_add_u32 v{vWm}, v{vW}, 2, v{vRm}")
    a(f"s_lshl_b32 s{sT}, s{sG}, 2")
    a(f"v_mov_b32 v{vDbg}, s{sT}")
    a(f"v_mov_b32 v{vI1}, 1")
    a(f"v_mov_b32 v{vDa}, {OFF_D}")
    a(f"s_add_u32 s14, s38, {AREA_A}")
    a("s_addc_u32 s15, s39, 0")
    a(f"s_cmp_eq_u32 s{sSp}, 0")
    a(f"s_cselect_b32 s{sTrig}, {TRIG}, -1")
    a(f"v_mov_b32 v{vC}, 0x{SCALE:08x}")
    a(f"v_and_b32 v{vX}, 1, v{vL}")
    a(f"v_lshlrev_b32 v{vX}, 4, v{vX}")
    a(f"v_mov_b32 v{vY}, 0xffff")
    a(f"v_lshlrev_b32 v{vX}, v{vX}, v{vY}")
    a(f"v_bfe_u32 v{vY}, v{vL}, 1, 2")
    for q in range(4):
        a(f"v_cmp_eq_u32 vcc, {q}, v{vY}")
        a("s_nop 1")
        a(f"v_cndmask_b32 v{vMask+q}, 0, v{vX}, vcc")
    for q in range(4):
        a(f"v_mov_b32 v{vO+q}, 0")
        a(f"v_mov_b32 v{vLa+q}, 0")
        a(f"v_mov_b32 v{vOne+q}, 0x3f803f80")
    a(f"v_mov_b32 v{vMs}, 0xff7fffff")
    a(f"s_mov_b32 s{sCnt}, 0")
    a.label("L_k")
    for s in range(R):
        for t in range(4):
            a(f"s_waitcnt vmcnt({INFL-1-t})")
            a(f"v_mfma_f32_16x16x32_bf16 {v4(vD+4*t)}, {buf(s,t)}, {v4(vQ)}, 0")
        if (NT - R) % R == s:
            a(f"s_cmp_lg_u32 s{sCnt}, {NT-R}")
            a(f"s_cbranch_scc1 L_ksw")
            a("s_mov_b64 s[8:9], s[12:13]")
            a(f"v_mov_b32 v{vA0}, v{vVl}")
            a.label("L_ksw")
        ld(s)
        a("s_nop 0")
        for q in range(4):
            for t in range(4):
                op = "v_mul_f32_dpp" if q == 0 else "v_fmac_f32_dpp"
                a(f"{op} v{vS+t}, v{vD+4*t+q}, v{vC} quad_perm:[{q},{q},{q},{q}] {DPPM}")
        a(f"v_max3_f32 v{vMs}, v{vMs}, v{vS}, v{vS+1}")
        a(f"ds_write_b128 v{vSa}, {v4(vS)}")
        a(f"v_max3_f32 v{vMs}, v{vMs}, v{vS+2}, v{vS+3}")
        a(f"v_add_u32 v{vSa}, 1024, v{vSa}")
        a(f"s_add_u32 s{sCnt}, s{sCnt}, 1")
        if (NT - 1) % R == s:
            a(f"s_cmp_eq_u32 s{sCnt}, {NT}")
            a("s_cbranch_scc1 L_kx")
    a("s_branch L_k")
    a.label("L_kx")
    a(f"v_subrev_u32 v{vSa}, {NT*1024}, v{vSa}")
    for sw in ("v_permlane16_swap_b32", "v_permlane32_swap_b32"):
        a(f"v_mov_b32 v{vX}, v{vMs}")
        a("s_nop 1")
        a(f"{sw} v{vMs}, v{vX}")
        a("s_nop 0")
        a(f"v_max_f32 v{vMs}, v{vMs}, v{vX}")
    a(f"ds_write_b32 v{vWs}, v{vMs}")
    a("s_waitcnt lgkmcnt(0)")
    a("s_barrier")
    for j in range(NS // 4):
        a(f"ds_read_b128 {v4(vD+4*j)}, v{vRs} offset:{16*j}")
    for j in range(NS // 4):
        a(f"ds_read_b128 {v4(vD+8+4*j)}, v{vRm} offset:{16*j}")
    a(f"ds_read_b128 {v4(vSn)}, v{vSa}")
    a("s_waitcnt lgkmcnt(1)")
    def maxn(dst, b):
        if NW == 1:
            a(f"v_mov_b32 v{dst}, v{b}")
        elif NW == 2:
            a(f"v_max_f32 v{dst}, v{b}, v{b+1}")
        else:
            a(f"v_max3_f32 v{dst}, v{b}, v{b+1}, v{b+2}")
            t = 3
            while t < NW:
                if t + 1 < NW:
                    a(f"v_max3_f32 v{dst}, v{dst}, v{b+t}, v{b+t+1}"); t += 2
                else:
                    a(f"v_max_f32 v{dst}, v{dst}, v{b+t}"); t += 1
    maxn(vMs, vD)
    maxn(vM, vD + 8)
    a(f"v_min_u32 v{vM}, -2, v{vM}")
    a(f"s_mov_b32 s{sCnt}, {NT}")
    s0 = NT % R
    a.label("L_v")
    for j in range(R):
        s = (s0 + j) % R
        if (NT - TRIG) % R == j:
            a(f"s_cmp_lg_u32 s{sCnt}, s{sTrig}")
            a("s_cbranch_scc1 L_notrig")
            a("s_barrier")
            a.label("L_notrig")
        a("s_waitcnt lgkmcnt(0)")
        for t in range(4):
            a(f"v_sub_f32 v{vS+t}, v{vSn+t}, v{vMs}")
        a(f"ds_read_b128 {v4(vSn)}, v{vSa} offset:1024")
        a(f"v_add_u32 v{vSa}, 1024, v{vSa}")
        for t in range(4):
            a(f"v_exp_f32 v{vS+t}, v{vS+t}")
        a(f"s_sub_u32 s{sCnt}, s{sCnt}, 1")
        for t in range(4):
            a(f"v_cvt_pk_bf16_f32 v{vS+t}, v{vS+t}, v{vS+t}")
        for t in range(4):
            for q in range(4):
                a(f"v_and_b32 v{vPd+q}, v{vS+t}, v{vMask+q}")
            a("s_nop 1")
            a(f"v_mfma_f32_16x16x32_bf16 {v4(vLa)}, {v4(vPd)}, {v4(vOne)}, {v4(vLa)}")
            a(f"s_waitcnt vmcnt({INFL-1-t})")
            a(f"v_mfma_f32_16x16x32_bf16 {v4(vO)}, {v4(vPd)}, {buf(s,t)}, {v4(vO)}")
        if (NT - 1) % R == j:
            a(f"s_cmp_eq_u32 s{sCnt}, 0")
            a("s_cbranch_scc1 L_vx")
        ld(s)
    a("s_branch L_v")
    a.label("L_vx")
    base = vTmp
    lb = base; ob = base + NS
    a("s_nop 3")
    a(f"ds_write_b32 v{vWm}, v{vLa} offset:{OFF_L-OFF_M}")
    a("s_nop 0")
    stamp(4)
    a(f"ds_write_b128 v{vWa}, {v4(vO)}")
    a("s_mov_b64 exec, 1")
    a(f"ds_add_rtn_u32 v{vArr}, v{vDa}, v{vI1}")
    a("s_mov_b64 exec, -1")
    for w in range(NW):
        a(f"ds_read_b128 {v4(ob+4*w)}, v{vRa} offset:{1024*w}")
    for j in range(NS // 4):
        a(f"ds_read_b128 {v4(lb+4*j)}, v{vRm} offset:{OFF_L-OFF_M+16*j}")
    a(f"ds_read_b32 v{vCnt}, v{vDa} offset:4")
    nrd = NW + NS // 4 + 1
    a(f"s_waitcnt lgkmcnt({nrd})")
    a(f"v_readfirstlane_b32 s{sT}, v{vArr}")
    a(f"s_cmp_lg_u32 s{sT}, {NW-1}")
    a("s_cbranch_scc1 L_end")
    stamp(2)
    for w in range(1, NW):
        a(f"s_waitcnt lgkmcnt({NW-1-w+NS//4+1})")
        src = ob if w == 1 else vO
        a(f"v_pk_add_f32 v[{vO}:{vO+1}], v[{src}:{src+1}], v[{ob+4*w}:{ob+4*w+1}]")
        a(f"v_pk_add_f32 v[{vO+2}:{vO+3}], v[{src+2}:{src+3}], v[{ob+4*w+2}:{ob+4*w+3}]")
    a("s_waitcnt lgkmcnt(0)")
    a(f"v_cmp_eq_u32 vcc, 0, v{vCnt}")
    for q in range(4):
        a(f"v_min_u32 v{vO+q}, -2, v{vO+q}")
    if NW == 1:
        a(f"v_mov_b32 v{vLs}, v{lb}")
    else:
        a(f"v_add_f32 v{vLs}, v{lb}, v{lb+1}")
    for w in range(2, NW):
        a(f"v_add_f32 v{vLs}, v{vLs}, v{lb+w}")
    a(f"v_min_u32 v{vLs}, -2, v{vLs}")
    a("s_cbranch_vccnz L_cnt")
    a.label("L_pub")
    if DUAL:
        a(f"global_store_dwordx4 v{vR1}, {v4(vO)}, s[14:15]")
        a(f"global_store_dwordx2 v{vR2}, v[{vM}:{vM+1}], s[14:15] offset:1024")
    a(f"global_store_dwordx4 v{vR1}, {v4(vO)}, s[38:39] sc1")
    a(f"global_store_dwordx2 v{vR2}, v[{vM}:{vM+1}], s[38:39] offset:1024 sc1")
    if stamps:
        stamp(3)
        a("s_waitcnt vmcnt(0)")
        stamp(5)
        stamp_out(0, [0, 1, 2, 3, 4, 5, 6])
        a(f"s_cmp_eq_u32 s{sSp}, 0")
        a("s_cbranch_scc1 L_end")
        a(f"global_store_dwordx2 v{vX}, v[{vTmp+10}:{vTmp+11}], s[38:39] offset:72")
    a("s_endpgm")
    a.label("L_cnt")
    a(f"s_mov_b32 s{sGc}, 0x100000")
    a.label("L_cnt2")
    a(f"global_load_dword v{vCnt}, v{vDbg}, s[36:37] sc1")
    a("s_waitcnt vmcnt(0)")
    a(f"v_cmp_eq_u32 vcc, 0, v{vCnt}")
    a("s_cbranch_vccz L_pub")
    a(f"s_sub_u32 s{sGc}, s{sGc}, 1")
    a("s_cbranch_scc0 L_cnt2")
    a("s_branch L_pub")

    a.label("L_helper")
    a(f"s_lshl_b32 s{sT}, s{sG}, 2")
    a(f"v_mov_b32 v{vDbg}, s{sT}")
    a(f"v_mov_b32 v{vI1}, 1")
    a(f"v_mov_b32 v{vDa}, {OFF_D}")
    a(f"v_mov_b32 v{vM}, 0")
    a(f"v_mov_b32 v{vM+1}, 0")
    a(f"ds_write_b64 v{vDa}, v[{vM}:{vM+1}]")
    a(f"s_cmp_eq_u32 s{sSp}, 0")
    a("s_cbranch_scc1 L_hcons")
    a("s_waitcnt lgkmcnt(0)")
    a("s_barrier")
    a(f"global_load_dword v{vCnt}, v{vDbg}, s[36:37] sc1")
    a("s_waitcnt vmcnt(0)")
    a(f"ds_write_b32 v{vDa}, v{vCnt} offset:4")
    a("s_endpgm")
    a.label("L_hcons")
    a(f"s_lshl_b32 s{sRec}, s{sG}, 14")
    a(f"s_add_u32 s{sT}, s{sRec}, 4096")
    a(f"v_lshl_add_u32 v{vR1}, v{vL}, 4, s{sT}")
    a(f"v_add_u32 v{vR3}, 8192, v{vR1}")
    a(f"v_lshrrev_b32 v{vY}, 5, v{vL}")
    a(f"v_lshl_add_u32 v{vR2}, v{vY}, 3, s{sRec}")
    a(f"v_and_b32 v{vX}, 7, v{vL}")
    a(f"v_lshl_add_u32 v{vR2}, v{vX}, 11, v{vR2}")
    a(f"v_lshlrev_b32 v{vOut}, 8, v{vY}")
    a(f"v_and_b32 v{vX}, 15, v{vL}")
    a(f"v_lshl_add_u32 v{vOut}, v{vX}, 4, v{vOut}")
    a(f"v_bfe_u32 v{vX}, v{vL}, 4, 1")
    a(f"v_lshl_add_u32 v{vOut}, v{vX}, 3, v{vOut}")
    a(f"v_add_u32 v{vOut}, s{sG512}, v{vOut}")
    a(f"s_add_u32 s14, s38, {AREA_A if DUAL else 0}")
    a("s_addc_u32 s15, s39, 0")
    for q in range(4):
        a(f"v_mov_b32 v{vPd+q}, -1")
    for b, f in ((("s[14:15]", ""), ("s[38:39]", "sc1")) if DUAL else (("s[38:39]", "sc1"),)):
        a(f"global_store_dwordx2 v{vR2}, v[{vPd}:{vPd+1}], {b} offset:1024 {f}")
        for s in range(8):
            a(f"global_store_dwordx4 v{vR1 if s<4 else vR3}, {v4(vPd)}, {b} offset:{(s%4)*2048-4096} {f}")
    a("s_waitcnt vmcnt(0)")
    a(f"global_store_dword v{vDbg}, v{vI1}, s[36:37] sc1")
    a(f"ds_write_b32 v{vDa}, v{vI1} offset:4")
    a("s_waitcnt lgkmcnt(0)")
    a("s_barrier")
    a("s_barrier")
    pO = base; pML = base + 32; vAcc = base + 36; vMx = base + 40; vG = base + 41; vT2 = base + 42
    a(f"s_mov_b32 s{sGc}, 0x100000")
    a.label("L_poll")
    a(f"global_load_dwordx2 v[{pML}:{pML+1}], v{vR2}, s[14:15] offset:1024 sc1")
    for s in range(8):
        a(f"global_load_dwordx4 {v4(pO+4*s)}, v{vR1 if s<4 else vR3}, s[14:15] offset:{(s%4)*2048-4096} sc1")
    a("s_waitcnt vmcnt(8)")
    a(f"v_max_u32 v{vMx}, v{pML}, v{pML+1}")
    a(f"v_max_f32_dpp v{vG}, v{pML}, v{pML} quad_perm:[1,0,3,2] {DPPM}")
    a("s_nop 1")
    a(f"v_max_f32_dpp v{vG}, v{vG}, v{vG} quad_perm:[2,3,0,1] {DPPM}")
    a("s_nop 1")
    a(f"v_max_f32_dpp v{vG}, v{vG}, v{vG} row_half_mirror {DPPM}")
    a(f"v_sub_f32 v{vG}, v{pML}, v{vG}")
    a(f"v_exp_f32 v{vG}, v{vG}")
    a("s_nop 0")
    a(f"v_mul_f32 v{vT2}, v{vG}, v{pML+1}")
    a("s_nop 1")
    a(f"v_add_f32_dpp v{vT2}, v{vT2}, v{vT2} quad_perm:[1,0,3,2] {DPPM}")
    a("s_nop 1")
    a(f"v_add_f32_dpp v{vT2}, v{vT2}, v{vT2} quad_perm:[2,3,0,1] {DPPM}")
    a("s_nop 1")
    a(f"v_add_f32_dpp v{vT2}, v{vT2}, v{vT2} row_half_mirror {DPPM}")
    a(f"v_rcp_f32 v{vT2}, v{vT2}")
    a("s_nop 0")
    a(f"v_mul_f32 v{vG}, v{vG}, v{vT2}")
    a("s_nop 0")
    for s in range(8):
        b = pO + 4 * s
        a(f"s_waitcnt vmcnt({7-s})")
        for q in range(4):
            op = "v_mul_f32_dpp" if s == 0 else "v_fmac_f32_dpp"
            a(f"{op} v{vAcc+q}, v{vG}, v{b+q} row_newbcast:{s} {DPPM}")
        a(f"v_max3_u32 v{vMx}, v{vMx}, v{b}, v{b+1}")
        a(f"v_max3_u32 v{vMx}, v{vMx}, v{b+2}, v{b+3}")
    a(f"v_cmp_eq_u32 vcc, -1, v{vMx}")
    a(f"v_cvt_pk_bf16_f32 v{vAcc}, v{vAcc}, v{vAcc+1}")
    a(f"v_cvt_pk_bf16_f32 v{vAcc+1}, v{vAcc+2}, v{vAcc+3}")
    a("s_cbranch_vccz L_go")
    if PSLP:
        a(f"s_sleep {PSLP}")
    if DUAL:
        a(f"s_cmp_lg_u32 s{sGc}, {0x100000-NA}")
        a("s_cbranch_scc1 L_same")
        a("s_mov_b64 s[14:15], s[38:39]")
        a.label("L_same")
    a(f"s_sub_u32 s{sGc}, s{sGc}, 1")
    a("s_cbranch_scc0 L_poll")
    a.label("L_go")
    a(f"global_store_dwordx2 v{vOut}, v[{vAcc}:{vAcc+1}], s[34:35] {OUTF}")
    if stamps:
        stamp(0)
        a("s_waitcnt vmcnt(0)")
        stamp(1)
        a(f"s_sub_u32 s44, 0x100000, s{sGc}")
        a("s_mov_b32 s45, 0")
        stamp_out(8, [0, 1, 2])
    a.label("L_end")
    a("s_endpgm")
    out = a.text()
    if spin is not None:
        out += spin_kernel(spin)
    out += desc(main, total_decl, 72, accum)
    if spin is not None:
        out += desc("spin_kernel", 64, 32, 64)
    return out

if __name__ == "__main__":
    p = argparse.ArgumentParser()
    p.add_argument("--nw", type=int, default=4)
    p.add_argument("--r", type=int, default=3)
    p.add_argument("--trig", type=int, default=2)
    p.add_argument("--na", type=int, default=24)
    p.add_argument("--single", action="store_true")
    p.add_argument("--pslp", type=int, default=0)
    p.add_argument("--outf", default="")
    p.add_argument("--flag", default="nt")
    p.add_argument("--xmap", default="xcd")
    p.add_argument("--stamps", action="store_true")
    p.add_argument("--spin", default=None)
    p.add_argument("-o", default="-")
    x = p.parse_args()
    s = gen(x.nw, x.r, x.flag, x.xmap, x.stamps, None if x.spin is None else tuple(int(t) for t in x.spin.split(",")),
            x.trig, x.na, not x.single, x.outf, x.pslp)
    open(x.o, "w").write(s) if x.o != "-" else sys.stdout.write(s)
```

```python
import sys, math, argparse
from gen import Asm, desc, HDR, NAME, SCALE
from gen2 import spin_kernel

AREA_A = 0x80000

def gen(NW=4, R=3, flag="nt", xmap="xcd", stamps=False, spin=None, TRIG=2, NA=24, DUAL=True, OUTF="", PSLP=0, FINE=True, NP=1, EFF=0, WARM=True, PF='sc1', AF='', HS=0, HGAP=0, DRY=False, TOUCH=False, QPOS=0, QF='', THR=-1, LATE=0, T2=-1, ABL=''):
    NWG = 256
    TB = 4096
    NT = 64 // NW
    NS = max(NW, 4)
    OFF_O = 65536
    OFF_M = OFF_O + NW * 1024
    OFF_L = OFF_M + 2 * NS * 4
    OFF_D = OFF_L + 2 * NS * 4
    LDS = max(OFF_D + 16, 84000)
    main = NAME + "_kernel"
    a = Asm()
    r = 1
    def alloc(n, align=1):
        nonlocal r
        r = (r + align - 1) // align * align
        b = r
        r += n
        return b
    vL = alloc(1); vW = alloc(1); vC = alloc(1)
    vX = alloc(1); vY = alloc(1); vR1 = alloc(1); vR2 = alloc(1); vR3 = alloc(1)
    vA0 = alloc(1); vVl = alloc(1); vCnt = alloc(1); vDbg = alloc(1); vI1 = alloc(1)
    vSa = alloc(1); vWa = alloc(1); vRa = alloc(1); vWm = alloc(1); vRm = alloc(1); vWs = alloc(1); vRs = alloc(1); vMs = alloc(1)
    vDa = alloc(1); vOut = alloc(1); vArr = alloc(1)
    vM = alloc(2, 2); vLs = vM + 1
    vQ = alloc(4, 4); vMask = alloc(4, 4); vPd = alloc(16, 4); vO = alloc(4, 4); vLa = alloc(4, 4); vOne = alloc(4, 4)
    vS = alloc(4, 4); vSn = alloc(4, 4)
    vD = alloc(16, 4)
    vB = alloc(R * 16, 4)
    vTmp = alloc(max(NS + 4 * NW, 44), 4)
    nv = r
    assert nv <= 256, nv
    total_decl = (nv + 7) // 8 * 8
    accum = (total_decl + 3) // 4 * 4
    def v4(b): return f"v[{b}:{b+3}]"
    def buf(s, t): return v4(vB + (s * 4 + t) * 4)
    sG, sSp, sG512, sWv = 16, 17, 19, 20
    sRec, sTrig, sCnt, sGc, sT, sT2, sStep = 23, 24, 25, 27, 28, 29, 30
    def ld(s):
        for t in range(4):
            a(f"buffer_load_dwordx4 {buf(s,t)}, v{vA0}, s[8:11], 0 offen offset:{t*1024} {flag}")
        a(f"v_add_u32 v{vA0}, s{sStep}, v{vA0}")
    def ld1(s, t):
        a(f"buffer_load_dwordx4 {buf(s,t)}, v{vA0}, s[8:11], 0 offen offset:{t*1024} {flag}")
        if t == 3:
            a(f"v_add_u32 v{vA0}, s{sStep}, v{vA0}")
    DPPM = "row_mask:0xf bank_mask:0xf"
    NTH = (NW + NP) * 64
    hdr = HDR
    if spin is not None:
        hdr += f"; @launch kernel={main} grid=({NWG},1,1) block=({NTH},1,1) lds={LDS}\n"
        hdr += f"; @launch kernel=spin_kernel grid=(1,1,1) block=(64,1,1) lds=0\n"
    else:
        hdr += f"; @launch grid=({NWG},1,1) block=({NTH},1,1) lds={LDS}\n"
    a.raw(hdr + '.amdgcn_target "amdgcn-amd-amdhsa--gfx950"\n.text')
    a.raw(f".globl {main}\n.p2align 8\n.type {main},@function")
    a.label(main)
    a("s_load_dwordx4 s[4:7], s[0:1], 0")
    a("s_load_dwordx8 s[32:39], s[0:1], 16")
    def stamp(i):
        if stamps:
            a(f"s_memrealtime s[{40+2*i}:{41+2*i}]")
            a("s_waitcnt lgkmcnt(0)")
    def stamp_out(slot0, idx):
        a("s_getreg_b32 s52, hwreg(HW_REG_XCC_ID)")
        a("s_getreg_b32 s53, hwreg(HW_REG_HW_ID)")
        a("s_lshl_b32 s18, s2, 7")
        a("s_add_u32 s18, s18, 0x8000000")
        a(f"v_mov_b32 v{vX}, s18")
        for i in idx:
            a(f"v_mov_b32 v{vTmp+2*i}, s{40+2*i}")
            a(f"v_mov_b32 v{vTmp+2*i+1}, s{41+2*i}")
        a("s_mov_b64 exec, 1")
        for i in idx:
            a(f"global_store_dwordx2 v{vX}, v[{vTmp+2*i}:{vTmp+2*i+1}], s[38:39] offset:{8*(i+slot0)}")
    if stamps:
        a("s_memrealtime s[40:41]")
    a(f"s_cmp_ge_u32 s2, {NWG}")
    a("s_cbranch_scc1 L_end")
    a(f"v_lshrrev_b32 v{vW}, 6, v0")
    if xmap == "xcd":
        a(f"s_and_b32 s{sG}, s2, 7")
        a(f"s_lshl_b32 s{sG}, s{sG}, 2")
        a(f"s_bfe_u32 s{sSp}, s2, 0x20003")
        a(f"s_or_b32 s{sG}, s{sG}, s{sSp}")
        a(f"s_lshr_b32 s{sSp}, s2, 5")
    else:
        a(f"s_lshr_b32 s{sG}, s2, 3")
        a(f"s_add_u32 s{sSp}, s2, s{sG}")
        a(f"s_and_b32 s{sSp}, s{sSp}, 7")
    a(f"v_readfirstlane_b32 s{sWv}, v{vW}")
    a(f"s_lshl_b32 s21, s{sG}, 21")
    a(f"s_lshl_b32 s{sT}, s{sSp}, 18")
    a(f"s_or_b32 s21, s21, s{sT}")
    a(f"s_lshl_b32 s{sG512}, s{sG}, 9")
    a("s_mov_b32 s10, 0x40000")
    a("s_mov_b32 s11, 0x20000")
    a(f"s_mov_b32 s{sStep}, {NW*TB}")
    a(f"v_and_b32 v{vL}, 63, v0")
    a(f"v_lshrrev_b32 v{vX}, 4, v{vL}")
    a(f"v_and_b32 v{vY}, 3, v{vL}")
    a(f"v_lshlrev_b32 v{vY}, 4, v{vY}")
    a(f"v_lshl_add_u32 v{vX}, v{vX}, 6, v{vY}")
    a(f"v_bfe_u32 v{vY}, v{vL}, 2, 2")
    a(f"v_lshl_add_u32 v{vA0}, v{vY}, 8, v{vX}")
    if "K" in ABL:
        a(f"v_lshlrev_b32 v{vA0}, 4, v{vL}")
    a(f"v_lshl_add_u32 v{vA0}, v{vW}, 12, v{vA0}")
    a(f"v_bfe_u32 v{vY}, v{vL}, 3, 1")
    a(f"v_lshl_add_u32 v{vX}, v{vY}, 8, v{vX}")
    a(f"v_add_u32 v{vX}, s{sG512}, v{vX}")
    a(f"s_cmp_ge_u32 s{sWv}, {NW}")
    a("s_waitcnt lgkmcnt(0)")
    a("s_cbranch_scc1 L_helper")
    if stamps:
        a("s_memrealtime s[42:43]")
    a("s_add_u32 s8, s6, s21")
    a("s_addc_u32 s9, s7, 0")
    for s in range(R + 1):
        if s == QPOS and "B" not in ABL:
            a(f"global_load_dwordx4 {v4(vQ)}, v{vX}, s[4:5] {QF}")
        if s < R:
            ld(s)
    INFL = 4 * R
    LNS = int(math.log2(NS * 4))
    a(f"v_lshlrev_b32 v{vRs}, {LNS}, v{vY}")
    a(f"v_add_u32 v{vRs}, {OFF_M}, v{vRs}")
    a(f"v_lshl_add_u32 v{vWs}, v{vW}, 2, v{vRs}")
    a("s_add_u32 s12, s32, s21")
    a("s_addc_u32 s13, s33, 0")
    a(f"v_lshlrev_b32 v{vVl}, 4, v{vL}")
    a(f"v_lshl_add_u32 v{vSa}, v{vW}, {int(math.log2(NT*1024))}, v{vVl}")
    a(f"v_add_u32 v{vRa}, {OFF_O}, v{vVl}")
    a(f"v_lshl_add_u32 v{vWa}, v{vW}, 10, v{vRa}")
    a(f"v_lshl_add_u32 v{vVl}, v{vW}, 12, v{vVl}")
    a(f"s_lshl_b32 s{sRec}, s{sG}, 3")
    a(f"s_or_b32 s{sRec}, s{sRec}, s{sSp}")
    a(f"s_lshl_b32 s{sRec}, s{sRec}, 11")
    a(f"v_lshl_add_u32 v{vR1}, v{vL}, 4, s{sRec}")
    a(f"v_lshrrev_b32 v{vY}, 5, v{vL}")
    a(f"v_lshl_add_u32 v{vR2}, v{vY}, 3, s{sRec}")
    a(f"v_lshlrev_b32 v{vRm}, {LNS}, v{vY}")
    a(f"v_add_u32 v{vRm}, {OFF_M}, v{vRm}")
    a(f"v_lshl_add_u32 v{vWm}, v{vW}, 2, v{vRm}")
    a(f"s_lshl_b32 s{sT}, s{sG}, 2")
    a(f"v_mov_b32 v{vDbg}, s{sT}")
    a(f"v_mov_b32 v{vI1}, 1")
    a(f"v_mov_b32 v{vDa}, {OFF_D}")
    a(f"s_add_u32 s14, s38, {AREA_A}")
    a("s_addc_u32 s15, s39, 0")
    a(f"s_cmp_eq_u32 s{sSp}, 0")
    a(f"s_cselect_b32 s{sTrig}, {TRIG}, -1")
    a(f"v_mov_b32 v{vC}, 0x{SCALE:08x}")
    a(f"v_and_b32 v{vX}, 1, v{vL}")
    a(f"v_lshlrev_b32 v{vX}, 4, v{vX}")
    a(f"v_mov_b32 v{vY}, 0xffff")
    a(f"v_lshlrev_b32 v{vX}, v{vX}, v{vY}")
    a(f"v_bfe_u32 v{vY}, v{vL}, 1, 2")
    for q in range(4):
        a(f"v_cmp_eq_u32 vcc, {q}, v{vY}")
        a("s_nop 1")
        a(f"v_cndmask_b32 v{vMask+q}, 0, v{vX}, vcc")
    for q in range(4):
        a(f"v_mov_b32 v{vO+q}, 0")
        a(f"v_mov_b32 v{vLa+q}, 0")
        a(f"v_mov_b32 v{vOne+q}, 0x3f803f80")
    a(f"v_mov_b32 v{vMs}, 0xff7fffff")
    a(f"s_mov_b32 s{sCnt}, 0")
    if QPOS:
        a(f"s_waitcnt vmcnt({4*(R-QPOS)})")
    a.label("L_k")
    for s in range(R):
        def ksw():
            if (NT - R) % R == s:
                a(f"s_cmp_lg_u32 s{sCnt}, {NT-R}")
                a(f"s_cbranch_scc1 L_ksw")
                a("s_mov_b64 s[8:9], s[12:13]")
                a(f"v_mov_b32 v{vA0}, v{vVl}")
                a.label("L_ksw")
        if FINE:
            ksw()
            for t in range(4):
                a(f"s_waitcnt vmcnt({(EFF or INFL)-1})")
                a(f"v_mfma_f32_16x16x32_bf16 {v4(vD+4*t)}, {buf(s,t)}, {v4(vQ)}, 0")
                ld1(s, t)
            a("s_nop 2")
        else:
            for t in range(4):
                a(f"s_waitcnt vmcnt({INFL-1-t})")
                a(f"v_mfma_f32_16x16x32_bf16 {v4(vD+4*t)}, {buf(s,t)}, {v4(vQ)}, 0")
            ksw()
            if THR >= 0:
                a(f"s_waitcnt vmcnt({THR})")
            ld(s)
            a("s_nop 0")
        for q in range(4):
            for t in range(4):
                op = "v_mul_f32_dpp" if q == 0 else "v_fmac_f32_dpp"
                a(f"{op} v{vS+t}, v{vD+4*t+q}, v{vC} quad_perm:[{q},{q},{q},{q}] {DPPM}")
        a(f"v_max3_f32 v{vMs}, v{vMs}, v{vS}, v{vS+1}")
        a(f"ds_write_b128 v{vSa}, {v4(vS)}")
        a(f"v_max3_f32 v{vMs}, v{vMs}, v{vS+2}, v{vS+3}")
        a(f"v_add_u32 v{vSa}, 1024, v{vSa}")
        a(f"s_add_u32 s{sCnt}, s{sCnt}, 1")
        if (NT - 1) % R == s:
            a(f"s_cmp_eq_u32 s{sCnt}, {NT}")
            a("s_cbranch_scc1 L_kx")
    a("s_branch L_k")
    a.label("L_kx")
    a(f"v_subrev_u32 v{vSa}, {NT*1024}, v{vSa}")
    for sw in ("v_permlane16_swap_b32", "v_permlane32_swap_b32"):
        a(f"v_mov_b32 v{vX}, v{vMs}")
        a("s_nop 1")
        a(f"{sw} v{vMs}, v{vX}")
        a("s_nop 0")
        a(f"v_max_f32 v{vMs}, v{vMs}, v{vX}")
    a(f"ds_write_b32 v{vWs}, v{vMs}")
    a("s_waitcnt lgkmcnt(0)")
    if "C" not in ABL:
        a("s_barrier")
    for j in range(NS // 4):
        a(f"ds_read_b128 {v4(vD+4*j)}, v{vRs} offset:{16*j}")
    for j in range(NS // 4):
        a(f"ds_read_b128 {v4(vD+8+4*j)}, v{vRm} offset:{16*j}")
    a(f"ds_read_b128 {v4(vSn)}, v{vSa}")
    a("s_waitcnt lgkmcnt(1)")
    def maxn(dst, b):
        if NW == 1:
            a(f"v_mov_b32 v{dst}, v{b}")
        elif NW == 2:
            a(f"v_max_f32 v{dst}, v{b}, v{b+1}")
        else:
            a(f"v_max3_f32 v{dst}, v{b}, v{b+1}, v{b+2}")
            t = 3
            while t < NW:
                if t + 1 < NW:
                    a(f"v_max3_f32 v{dst}, v{dst}, v{b+t}, v{b+t+1}"); t += 2
                else:
                    a(f"v_max_f32 v{dst}, v{dst}, v{b+t}"); t += 1
    maxn(vMs, vD)
    maxn(vM, vD + 8)
    a(f"v_min_u32 v{vM}, -2, v{vM}")
    a(f"s_mov_b32 s{sCnt}, {NT}")
    s0 = NT % R
    a.label("L_v")
    for j in range(R):
        s = (s0 + j) % R
        if TRIG > 0 and (NT - TRIG) % R == j:
            a(f"s_cmp_lg_u32 s{sCnt}, s{sTrig}")
            a("s_cbranch_scc1 L_notrig")
            a("s_barrier")
            a.label("L_notrig")
        a("s_waitcnt lgkmcnt(0)")
        for t in range(4):
            a(f"v_sub_f32 v{vS+t}, v{vSn+t}, v{vMs}")
        a(f"ds_read_b128 {v4(vSn)}, v{vSa} offset:1024")
        a(f"v_add_u32 v{vSa}, 1024, v{vSa}")
        for t in range(4):
            a(f"v_exp_f32 v{vS+t}, v{vS+t}")
        a(f"s_sub_u32 s{sCnt}, s{sCnt}, 1")
        for t in range(4):
            a(f"v_cvt_pk_bf16_f32 v{vS+t}, v{vS+t}, v{vS+t}")
        for t in range(4):
            for q in range(4):
                a(f"v_and_b32 v{vPd+4*t+q}, v{vS+t}, v{vMask+q}")
        for t in range(4):
            a(f"v_mfma_f32_16x16x32_bf16 {v4(vLa)}, {v4(vPd+4*t)}, {v4(vOne)}, {v4(vLa)}")
        last = (NT - 1) % R == j
        if last:
            a(f"s_cmp_eq_u32 s{sCnt}, 0")
        for t in range(4):
            a(f"s_waitcnt vmcnt({(EFF or INFL)-1 if FINE else INFL-1-t})")
            a(f"v_mfma_f32_16x16x32_bf16 {v4(vO)}, {v4(vPd+4*t)}, {buf(s,t)}, {v4(vO)}")
            if last and t == 3:
                a("s_cbranch_scc1 L_vx")
            if FINE:
                ld1(s, t)
        if not FINE:
            if THR >= 0:
                a(f"s_cmp_lt_u32 s{sCnt}, {LATE}")
                a(f"s_cbranch_scc1 L_nothr{j}")
                a(f"s_waitcnt vmcnt({THR})")
                a.label(f"L_nothr{j}")
            ld(s)
    a("s_branch L_v")
    a.label("L_vx")
    base = vTmp
    lb = base; ob = base + NS
    a(f"ds_write_b32 v{vWm}, v{vLa} offset:{OFF_L-OFF_M}")
    a("s_nop 5")
    stamp(4)
    a(f"ds_write_b128 v{vWa}, {v4(vO)}")
    a("s_mov_b64 exec, 1")
    a(f"ds_add_rtn_u32 v{vArr}, v{vDa}, v{vI1}")
    a("s_mov_b64 exec, -1")
    for w in range(NW):
        a(f"ds_read_b128 {v4(ob+4*w)}, v{vRa} offset:{1024*w}")
    for j in range(NS // 4):
        a(f"ds_read_b128 {v4(lb+4*j)}, v{vRm} offset:{OFF_L-OFF_M+16*j}")
    a(f"ds_read_b32 v{vCnt}, v{vDa} offset:4")
    nrd = NW + NS // 4 + 1
    a(f"s_waitcnt lgkmcnt({nrd})")
    a(f"v_readfirstlane_b32 s{sT}, v{vArr}")
    a(f"s_cmp_lg_u32 s{sT}, {NW-1}")
    a("s_cbranch_scc1 L_end")
    if TRIG == -1:
        a("s_barrier")
    stamp(2)
    for w in range(1, NW):
        a(f"s_waitcnt lgkmcnt({NW-1-w+NS//4+1})")
        src = ob if w == 1 else vO
        a(f"v_pk_add_f32 v[{vO}:{vO+1}], v[{src}:{src+1}], v[{ob+4*w}:{ob+4*w+1}]")
        a(f"v_pk_add_f32 v[{vO+2}:{vO+3}], v[{src+2}:{src+3}], v[{ob+4*w+2}:{ob+4*w+3}]")
    a("s_waitcnt lgkmcnt(0)")
    a(f"v_cmp_eq_u32 vcc, 0, v{vCnt}")
    for q in range(4):
        a(f"v_min_u32 v{vO+q}, -2, v{vO+q}")
    if NW == 1:
        a(f"v_mov_b32 v{vLs}, v{lb}")
    else:
        a(f"v_add_f32 v{vLs}, v{lb}, v{lb+1}")
    for w in range(2, NW):
        a(f"v_add_f32 v{vLs}, v{vLs}, v{lb+w}")
    a(f"v_min_u32 v{vLs}, -2, v{vLs}")
    a("s_cbranch_vccnz L_cnt")
    a.label("L_pub")
    if DUAL:
        a(f"global_store_dwordx4 v{vR1}, {v4(vO)}, s[14:15] {AF}")
        a(f"global_store_dwordx2 v{vR2}, v[{vM}:{vM+1}], s[14:15] offset:1024 {AF}")
    a(f"global_store_dwordx4 v{vR1}, {v4(vO)}, s[38:39] sc1")
    a(f"global_store_dwordx2 v{vR2}, v[{vM}:{vM+1}], s[38:39] offset:1024 sc1")
    if TRIG == 0:
        a("s_barrier")
    if stamps:
        stamp(3)
        a("s_waitcnt vmcnt(0)")
        stamp(5)
        stamp_out(0, [0, 1, 2, 3, 4, 5, 6])
        a(f"s_cmp_eq_u32 s{sSp}, 0")
        a("s_cbranch_scc1 L_end")
        a(f"global_store_dwordx2 v{vX}, v[{vTmp+10}:{vTmp+11}], s[38:39] offset:72")
    a("s_endpgm")
    a.label("L_cnt")
    a(f"s_mov_b32 s{sGc}, 0x100000")
    a.label("L_cnt2")
    a(f"global_load_dword v{vCnt}, v{vDbg}, s[36:37] sc1")
    a("s_waitcnt vmcnt(0)")
    a(f"v_cmp_eq_u32 vcc, 0, v{vCnt}")
    a("s_cbranch_vccz L_pub")
    a(f"s_sub_u32 s{sGc}, s{sGc}, 1")
    a("s_cbranch_scc0 L_cnt2")
    a("s_branch L_pub")

    W = 4 // NP
    a.label("L_helper")
    a(f"s_lshl_b32 s{sT}, s{sG}, 2")
    a(f"v_mov_b32 v{vDbg}, s{sT}")
    a(f"v_mov_b32 v{vI1}, 1")
    a(f"v_mov_b32 v{vDa}, {OFF_D}")
    a(f"v_mov_b32 v{vM}, 0")
    a(f"v_mov_b32 v{vM+1}, 0")
    if "A" in ABL:
        a(f"v_mov_b32 v{vM+1}, 1")
        a(f"ds_write_b64 v{vDa}, v[{vM}:{vM+1}]")
        a("s_endpgm")
    a(f"s_sub_u32 s{sWv}, s{sWv}, {NW}")
    if TOUCH:
        a(f"v_mov_b32 v{vX}, s21")
        a(f"v_mov_b32 v{vY}, {AREA_A + 0x70000}")
        a("s_mov_b64 exec, 1")
        a("s_sleep 100")
        if TOUCH & 1:
            a(f"global_load_dword v{vS}, v{vX}, s[32:33] nt")
        if TOUCH & 2:
            a(f"global_load_dword v{vS+1}, v{vY}, s[38:39] nt")
        if TOUCH & 4:
            a(f"global_load_dword v{vS+2}, v{vM}, s[34:35] nt")
        a("s_mov_b64 exec, -1")
    a(f"s_cmp_eq_u32 s{sSp}, 0")
    a("s_cbranch_scc1 L_hcons")
    if NP > 1:
        a(f"s_cmp_lg_u32 s{sWv}, 0")
        a("s_cbranch_scc1 L_end")
    a(f"ds_write_b64 v{vDa}, v[{vM}:{vM+1}]")
    a("s_waitcnt lgkmcnt(0)")
    a("s_barrier")
    if "F" in ABL:
        a(f"v_mov_b32 v{vCnt}, 1")
    else:
        a(f"global_load_dword v{vCnt}, v{vDbg}, s[36:37] sc1")
    a("s_waitcnt vmcnt(0)")
    a(f"ds_write_b32 v{vDa}, v{vCnt} offset:4")
    if T2 >= 0:
        a(f"s_lshr_b32 s{sT}, s21, 7")
        a(f"v_mov_b32 v{vX}, s{sT}")
        a(f"v_add_u32 v{vY}, {AREA_A}, v{vX}")
        for i in range(T2):
            a("s_sleep 64")
        a("s_mov_b64 exec, 1")
        a(f"global_load_dword v{vS}, v{vX}, s[38:39] offset:1536 sc1")
        a(f"global_load_dword v{vS+1}, v{vY}, s[38:39] offset:1536 sc1")
    a("s_endpgm")
    a.label("L_hcons")
    a(f"s_lshl_b32 s{sRec}, s{sG}, 14")
    a(f"s_add_u32 s{sT}, s{sRec}, 4096")
    a(f"v_lshl_add_u32 v{vR1}, v{vL}, 4, s{sT}")
    a(f"v_add_u32 v{vR3}, 8192, v{vR1}")
    a(f"v_lshrrev_b32 v{vY}, 5, v{vL}")
    a(f"v_lshl_add_u32 v{vR2}, v{vY}, 3, s{sRec}")
    a(f"v_and_b32 v{vX}, 7, v{vL}")
    a(f"v_lshl_add_u32 v{vR2}, v{vX}, 11, v{vR2}")
    a(f"v_lshlrev_b32 v{vOut}, 8, v{vY}")
    a(f"v_and_b32 v{vX}, 15, v{vL}")
    a(f"v_lshl_add_u32 v{vOut}, v{vX}, 4, v{vOut}")
    a(f"v_bfe_u32 v{vX}, v{vL}, 4, 1")
    a(f"v_lshl_add_u32 v{vOut}, v{vX}, 3, v{vOut}")
    a(f"v_add_u32 v{vOut}, s{sG512}, v{vOut}")
    a(f"s_add_u32 s14, s38, {AREA_A if DUAL else 0}")
    a("s_addc_u32 s15, s39, 0")
    if NP > 1:
        a(f"s_cmp_lg_u32 s{sWv}, 0")
        a("s_cbranch_scc1 L_hwait")
    a(f"v_mov_b32 v{vM+1}, 1")
    for q in range(4):
        a(f"v_mov_b32 v{vPd+q}, -1")
    if HS:
        a(f"s_sleep {HS}")
    for b, f in ((("s[14:15]", ""), ("s[38:39]", "sc1")) if DUAL else (("s[38:39]", "sc1"),)):
        a(f"global_store_dwordx2 v{vR2}, v[{vPd}:{vPd+1}], {b} offset:1024 {f}")
        for s in range(8):
            a(f"global_store_dwordx4 v{vR1 if s<4 else vR3}, {v4(vPd)}, {b} offset:{(s%4)*2048-4096} {f}")
            if HGAP:
                a("s_waitcnt vmcnt(0)")
    a("s_waitcnt vmcnt(0)")
    if DRY:
        assert NP == 1 and not WARM
        a(f"s_mov_b32 s{sGc}, 0x100001")
        a("s_mov_b64 exec, 1")
        a("s_branch L_poll")
        a.label("L_dryback")
        a("s_mov_b64 exec, -1")
    a(f"global_store_dword v{vDbg}, v{vI1}, s[36:37] sc1")
    a(f"ds_write_b64 v{vDa}, v[{vM}:{vM+1}]")
    a("s_waitcnt lgkmcnt(0)")
    a.label("L_hwait")
    if NP > 1:
        a(f"s_mul_i32 s{sT}, s{sWv}, {W*4}")
        a(f"v_add_u32 v{vR1}, s{sT}, v{vR1}")
        a(f"v_add_u32 v{vR3}, s{sT}, v{vR3}")
        a(f"s_lshr_b32 s{sT}, s{sT}, 1")
        a(f"v_add_u32 v{vOut}, s{sT}, v{vOut}")
    a(f"s_mov_b32 s{sGc}, 0x100000")
    a("s_barrier")
    vDry = base + 43
    if T2 >= 0:
        assert not WARM and not DRY
        for i in range(T2):
            a("s_sleep 64")
        a(f"v_mov_b32 v{vDry}, -1")
        a(f"s_mov_b32 s{sGc}, 0x100001")
        a("s_mov_b64 exec, 1")
        a(f"global_load_dword v{vS}, v{vOut}, s[34:35] sc1")
        a(f"global_load_dword v{vS+1}, v{vR2}, s[38:39] offset:1536 sc1")
        a("s_branch L_poll")
        a.label("L_dryback")
        a("s_mov_b64 exec, -1")
        a(f"s_mov_b32 s{sGc}, 0x100000")
    a(f"v_mov_b32 v{vDry}, 0")
    if not WARM:
        a("s_barrier")
    pO = base; pML = base + 32; vAcc = base + 36; vMx = base + 40; vG = base + 41; vT2 = base + 42
    a.label("L_poll")
    a(f"global_load_dwordx2 v[{pML}:{pML+1}], v{vR2}, s[14:15] offset:1024 {PF}")
    for s in range(8):
        b = pO + 4 * s
        dst = {4: f"dwordx4 v[{b}:{b+3}]", 2: f"dwordx2 v[{b}:{b+1}]", 1: f"dword v{b}"}[W]
        a(f"global_load_{dst}, v{vR1 if s<4 else vR3}, s[14:15] offset:{(s%4)*2048-4096} {PF}")
    pos = [0]; wr = {}; tr = {}
    def emit(txt, w=None, rd=(), dpp=False, trans=False):
        need = 0
        for x in rd:
            if dpp and x in wr:
                need = max(need, 2 - (pos[0] - wr[x] - 1))
            if not trans and x in tr:
                need = max(need, 1 - (pos[0] - tr[x] - 1))
        if need > 0:
            a(f"s_nop {need-1}"); pos[0] += need
        a(txt)
        if w is not None:
            wr[w] = pos[0]
            if trans: tr[w] = pos[0]
            else: tr.pop(w, None)
        pos[0] += 1
    def wait(n): emit(f"s_waitcnt vmcnt({n})")
    def dppop(op, d, ctl): emit(f"{op} v{d}, v{d}, v{d} {ctl} {DPPM}", d, (d,), dpp=True)
    pend = []
    def chk(s):
        b = pO + 4 * s
        pend.extend(range(b, b + W))
        while len(pend) >= 2:
            x, y = pend.pop(0), pend.pop(0)
            emit(f"v_max3_u32 v{vMx}, v{vMx}, v{x}, v{y}", vMx, (vMx,))
    def acc(s):
        b = pO + 4 * s
        for q in range(W):
            op = "v_mul_f32_dpp" if s == 0 else "v_fmac_f32_dpp"
            emit(f"{op} v{vAcc+q}, v{vG}, v{b+q} row_newbcast:{s} {DPPM}", vAcc + q, (vG, vAcc + q), dpp=True)
    wait(8)
    emit(f"v_max_f32_dpp v{vG}, v{pML}, v{pML} quad_perm:[1,0,3,2] {DPPM}", vG)
    emit(f"v_max3_u32 v{vMx}, v{pML}, v{pML+1}, v{vDry}", vMx)
    wait(7)
    dppop("v_max_f32_dpp", vG, "quad_perm:[2,3,0,1]")
    chk(0)
    dppop("v_max_f32_dpp", vG, "row_half_mirror")
    emit(f"v_sub_f32 v{vG}, v{pML}, v{vG}", vG, (vG,))
    emit(f"v_exp_f32 v{vG}, v{vG}", vG, (vG,), trans=True)
    wait(6)
    emit(f"v_mul_f32 v{vT2}, v{vG}, v{pML+1}", vT2, (vG,))
    chk(1)
    acc(0)
    dppop("v_add_f32_dpp", vT2, "quad_perm:[1,0,3,2]")
    acc(1)
    wait(5)
    dppop("v_add_f32_dpp", vT2, "quad_perm:[2,3,0,1]")
    acc(2); chk(2)
    wait(4)
    dppop("v_add_f32_dpp", vT2, "row_half_mirror")
    acc(3)
    emit(f"v_rcp_f32 v{vT2}, v{vT2}", vT2, (vT2,), trans=True)
    chk(3)
    for s in range(4, 8):
        wait(7 - s)
        acc(s); chk(s)
    assert not pend
    emit(f"v_cmp_eq_u32 vcc, -1, v{vMx}")
    for q in range(W):
        emit(f"v_mul_f32 v{vAcc+q}, v{vT2}, v{vAcc+q}", vAcc + q, (vT2,))
    if W == 4:
        a(f"v_cvt_pk_bf16_f32 v{vAcc}, v{vAcc}, v{vAcc+1}")
        a(f"v_cvt_pk_bf16_f32 v{vAcc+1}, v{vAcc+2}, v{vAcc+3}")
    else:
        a(f"v_cvt_pk_bf16_f32 v{vAcc}, v{vAcc}, v{vAcc+W-1}")
    a("s_cbranch_vccz L_go")
    if DRY or T2 >= 0:
        a(f"s_cmp_eq_u32 s{sGc}, 0x100001")
        a("s_cbranch_scc1 L_dryback")
    if WARM:
        a(f"s_cmp_lg_u32 s{sGc}, 0x100000")
        a("s_cbranch_scc1 L_nw")
        a("s_barrier")
        a.label("L_nw")
    if PSLP:
        a(f"s_sleep {PSLP}")
    if DUAL:
        a(f"s_cmp_lg_u32 s{sGc}, {0x100000-NA}")
        a("s_cbranch_scc1 L_same")
        a("s_mov_b64 s[14:15], s[38:39]")
        a.label("L_same")
    a(f"s_sub_u32 s{sGc}, s{sGc}, 1")
    a("s_cbranch_scc0 L_poll")
    a.label("L_go")
    st = {4: f"dwordx2 v{vOut}, v[{vAcc}:{vAcc+1}]", 2: f"dword v{vOut}, v{vAcc}", 1: f"short v{vOut}, v{vAcc}"}[W]
    a(f"global_store_{st}, s[34:35] {OUTF}")
    if stamps:
        stamp(0)
        a("s_waitcnt vmcnt(0)")
        stamp(1)
        a(f"s_sub_u32 s44, 0x100000, s{sGc}")
        a("s_mov_b32 s45, 0")
        stamp_out(8, [0, 1, 2])
    a.label("L_end")
    a("s_endpgm")
    out = a.text()
    if spin is not None:
        out += spin_kernel(spin)
    out += desc(main, total_decl, 72, accum)
    if spin is not None:
        out += desc("spin_kernel", 64, 32, 64)
    return out

if __name__ == "__main__":
    p = argparse.ArgumentParser()
    p.add_argument("--nw", type=int, default=4)
    p.add_argument("--r", type=int, default=3)
    p.add_argument("--trig", type=int, default=2)
    p.add_argument("--na", type=int, default=24)
    p.add_argument("--single", action="store_true")
    p.add_argument("--pslp", type=int, default=0)
    p.add_argument("--coarse", action="store_true")
    p.add_argument("--np", type=int, default=1)
    p.add_argument("--eff", type=int, default=0)
    p.add_argument("--nowarm", action="store_true")
    p.add_argument("--pf", default="sc1")
    p.add_argument("--af", default="")
    p.add_argument("--hs", type=int, default=0)
    p.add_argument("--hgap", type=int, default=0)
    p.add_argument("--dry", action="store_true")
    p.add_argument("--touch", type=int, default=0)
    p.add_argument("--qpos", type=int, default=0)
    p.add_argument("--qf", default="")
    p.add_argument("--thr", type=int, default=-1)
    p.add_argument("--late", type=int, default=0)
    p.add_argument("--t2", type=int, default=-1)
    p.add_argument("--abl", default="")
    p.add_argument("--outf", default="")
    p.add_argument("--flag", default="nt")
    p.add_argument("--xmap", default="xcd")
    p.add_argument("--stamps", action="store_true")
    p.add_argument("--spin", default=None)
    p.add_argument("-o", default="-")
    x = p.parse_args()
    s = gen(x.nw, x.r, x.flag, x.xmap, x.stamps, None if x.spin is None else tuple(int(t) for t in x.spin.split(",")),
            x.trig, x.na, not x.single, x.outf, x.pslp, not x.coarse, x.np, x.eff, not x.nowarm, x.pf, x.af, x.hs, x.hgap, x.dry, x.touch, x.qpos, x.qf, x.thr, x.late, x.t2, x.abl)
    open(x.o, "w").write(s) if x.o != "-" else sys.stdout.write(s)
```

```python
import sys, math, argparse
from gen import Asm, desc, HDR, NAME, SCALE
from gen2 import spin_kernel

def gen(NW=4, R=2, flag="nt", xmap="xcd", stamps=False, spin=None, TRIG=0, FINE=True, EFF=0, QPOS=1, PRE=True, HS=0, LEAN=False, SFLAG=False, LATE=0):
    NWG = 256
    TB = 4096
    NT = 64 // NW
    NS = max(NW, 4)
    OFF_O = 65536
    OFF_M = OFF_O + NW * 1024
    OFF_L = OFF_M + 2 * NS * 4
    OFF_D = OFF_L + 2 * NS * 4
    LDS = max(OFF_D + 16, 84000)
    main = NAME + "_kernel"
    a = Asm()
    r = 1
    def alloc(n, align=1):
        nonlocal r
        r = (r + align - 1) // align * align
        b = r
        r += n
        return b
    vL = alloc(1); vW = alloc(1); vC = alloc(1)
    vX = alloc(1); vY = alloc(1); vR1 = alloc(1); vR2 = alloc(1); vR3 = alloc(1)
    vA0 = alloc(1); vVl = alloc(1); vCnt = alloc(1); vDbg = alloc(1); vI1 = alloc(1)
    vSa = alloc(1); vWa = alloc(1); vRa = alloc(1); vWm = alloc(1); vRm = alloc(1); vWs = alloc(1); vRs = alloc(1); vMs = alloc(1)
    vDa = alloc(1); vOut = alloc(1); vArr = alloc(1)
    vM = alloc(2, 2); vLs = vM + 1
    vQ = alloc(4, 4); vMask = alloc(4, 4); vPd = alloc(16, 4); vO = alloc(4, 4); vLa = alloc(4, 4); vOne = alloc(4, 4)
    vS = alloc(4, 4); vSn = alloc(4, 4)
    vD = alloc(16, 4)
    vB = alloc(R * 16, 4)
    vTmp = alloc(max(NS + 4 * NW, 44), 4)
    nv = r
    assert nv <= 256, nv
    total_decl = (nv + 7) // 8 * 8
    accum = (total_decl + 3) // 4 * 4
    def v4(b): return f"v[{b}:{b+3}]"
    def buf(s, t): return v4(vB + (s * 4 + t) * 4)
    sG, sSp, sXc, sG512, sWv = 16, 17, 18, 19, 20
    sRec, sTrig, sCnt, sGc, sT, sT2, sStep = 23, 24, 25, 27, 28, 29, 30
    def ld1(s, t):
        a(f"buffer_load_dwordx4 {buf(s,t)}, v{vA0}, s[8:11], 0 offen offset:{t*1024} {flag}")
        if t == 3:
            a(f"v_add_u32 v{vA0}, s{sStep}, v{vA0}")
    def ld(s):
        for t in range(4):
            ld1(s, t)
    DPPM = "row_mask:0xf bank_mask:0xf"
    NTH = (NW + 1) * 64
    hdr = HDR
    if spin is not None:
        hdr += f"; @launch kernel={main} grid=({NWG},1,1) block=({NTH},1,1) lds={LDS}\n"
        hdr += f"; @launch kernel=spin_kernel grid=(1,1,1) block=(64,1,1) lds=0\n"
    else:
        hdr += f"; @launch grid=({NWG},1,1) block=({NTH},1,1) lds={LDS}\n"
    a.raw(hdr + '.amdgcn_target "amdgcn-amd-amdhsa--gfx950"\n.text')
    a.raw(f".globl {main}\n.p2align 8\n.type {main},@function")
    a.label(main)
    a("s_load_dwordx4 s[4:7], s[0:1], 0")
    a("s_load_dwordx8 s[32:39], s[0:1], 16")
    def stamp(i):
        if stamps:
            a(f"s_memrealtime s[{40+2*i}:{41+2*i}]")
            a("s_waitcnt lgkmcnt(0)")
    def stamp_out(slot0, idx):
        a("s_getreg_b32 s52, hwreg(HW_REG_XCC_ID)")
        a("s_getreg_b32 s53, hwreg(HW_REG_HW_ID)")
        a("s_lshl_b32 s22, s2, 7")
        a("s_add_u32 s22, s22, 0x8000000")
        a(f"v_mov_b32 v{vX}, s22")
        for i in idx:
            a(f"v_mov_b32 v{vTmp+2*i}, s{40+2*i}")
            a(f"v_mov_b32 v{vTmp+2*i+1}, s{41+2*i}")
        a("s_mov_b64 exec, 1")
        for i in idx:
            a(f"global_store_dwordx2 v{vX}, v[{vTmp+2*i}:{vTmp+2*i+1}], s[38:39] offset:{8*(i+slot0)}")
    if stamps:
        a("s_memrealtime s[40:41]")
    a(f"s_cmp_ge_u32 s2, {NWG}")
    a("s_cbranch_scc1 L_end")
    a(f"v_lshrrev_b32 v{vW}, 6, v0")
    if xmap == "xcd":
        a(f"s_and_b32 s{sG}, s2, 7")
        a(f"s_lshl_b32 s{sG}, s{sG}, 2")
        a(f"s_bfe_u32 s{sSp}, s2, 0x20003")
        a(f"s_or_b32 s{sG}, s{sG}, s{sSp}")
        a(f"s_lshr_b32 s{sSp}, s2, 5")
    else:
        a(f"s_lshr_b32 s{sG}, s2, 3")
        a(f"s_add_u32 s{sSp}, s2, s{sG}")
        a(f"s_and_b32 s{sSp}, s{sSp}, 7")
    a(f"v_readfirstlane_b32 s{sWv}, v{vW}")
    a(f"s_lshl_b32 s21, s{sG}, 21")
    a(f"s_lshl_b32 s{sT}, s{sSp}, 18")
    a(f"s_or_b32 s21, s21, s{sT}")
    a(f"s_lshl_b32 s{sG512}, s{sG}, 9")
    a("s_mov_b32 s10, 0x40000")
    a("s_mov_b32 s11, 0x20000")
    a(f"s_mov_b32 s{sStep}, {NW*TB}")
    a(f"v_and_b32 v{vL}, 63, v0")
    a(f"v_lshrrev_b32 v{vX}, 4, v{vL}")
    a(f"v_and_b32 v{vY}, 3, v{vL}")
    a(f"v_lshlrev_b32 v{vY}, 4, v{vY}")
    a(f"v_lshl_add_u32 v{vX}, v{vX}, 6, v{vY}")
    a(f"v_bfe_u32 v{vY}, v{vL}, 2, 2")
    a(f"v_lshl_add_u32 v{vA0}, v{vY}, 8, v{vX}")
    a(f"v_lshl_add_u32 v{vA0}, v{vW}, 12, v{vA0}")
    a(f"v_bfe_u32 v{vY}, v{vL}, 3, 1")
    a(f"v_lshl_add_u32 v{vX}, v{vY}, 8, v{vX}")
    a(f"v_add_u32 v{vX}, s{sG512}, v{vX}")
    a(f"s_cmp_ge_u32 s{sWv}, {NW}")
    a("s_waitcnt lgkmcnt(0)")
    a("s_cbranch_scc1 L_helper")
    if stamps:
        a("s_memrealtime s[42:43]")
    a("s_add_u32 s8, s6, s21")
    a("s_addc_u32 s9, s7, 0")
    for s in range(R + 1):
        if s == QPOS:
            a(f"global_load_dwordx4 {v4(vQ)}, v{vX}, s[4:5]")
        if s < R:
            ld(s)
    INFL = 4 * R
    LNS = int(math.log2(NS * 4))
    a(f"v_lshlrev_b32 v{vRs}, {LNS}, v{vY}")
    a(f"v_add_u32 v{vRs}, {OFF_M}, v{vRs}")
    a(f"v_lshl_add_u32 v{vWs}, v{vW}, 2, v{vRs}")
    a("s_add_u32 s12, s32, s21")
    a("s_addc_u32 s13, s33, 0")
    a(f"v_lshlrev_b32 v{vVl}, 4, v{vL}")
    a(f"v_lshl_add_u32 v{vSa}, v{vW}, {int(math.log2(NT*1024))}, v{vVl}")
    a(f"v_add_u32 v{vRa}, {OFF_O}, v{vVl}")
    a(f"v_lshl_add_u32 v{vWa}, v{vW}, 10, v{vRa}")
    a(f"s_lshr_b32 s{sRec}, s21, 7")
    a(f"v_add_u32 v{vR1}, s{sRec}, v{vVl}")
    a(f"v_lshl_add_u32 v{vVl}, v{vW}, 12, v{vVl}")
    a(f"v_lshrrev_b32 v{vY}, 5, v{vL}")
    a(f"v_lshl_add_u32 v{vR2}, v{vY}, 3, s{sRec}")
    a(f"v_lshlrev_b32 v{vRm}, {LNS}, v{vY}")
    a(f"v_add_u32 v{vRm}, {OFF_M}, v{vRm}")
    a(f"v_lshl_add_u32 v{vWm}, v{vW}, 2, v{vRm}")
    a(f"s_lshl_b32 s{sT}, s{sG}, 2")
    a(f"v_mov_b32 v{vDbg}, s{sT}")
    a(f"v_mov_b32 v{vI1}, 1")
    a(f"v_mov_b32 v{vDa}, {OFF_D}")
    a(f"s_getreg_b32 s{sXc}, hwreg(HW_REG_XCC_ID, 0, 4)")
    a(f"s_or_b32 s{sXc}, s{sXc}, 0x100")
    if TRIG > 0:
        a(f"s_cmp_eq_u32 s{sSp}, 0")
        a(f"s_cselect_b32 s{sTrig}, {TRIG}, {TRIG if LATE else -1}")
    a(f"v_mov_b32 v{vC}, 0x{SCALE:08x}")
    a(f"v_and_b32 v{vX}, 1, v{vL}")
    a(f"v_lshlrev_b32 v{vX}, 4, v{vX}")
    a(f"v_mov_b32 v{vY}, 0xffff")
    a(f"v_lshlrev_b32 v{vX}, v{vX}, v{vY}")
    a(f"v_bfe_u32 v{vY}, v{vL}, 1, 2")
    for q in range(4):
        a(f"v_cmp_eq_u32 vcc, {q}, v{vY}")
        a("s_nop 1")
        a(f"v_cndmask_b32 v{vMask+q}, 0, v{vX}, vcc")
    for q in range(4):
        a(f"v_mov_b32 v{vO+q}, 0")
        a(f"v_mov_b32 v{vLa+q}, 0")
        a(f"v_mov_b32 v{vOne+q}, 0x3f803f80")
    a(f"v_mov_b32 v{vMs}, 0xff7fffff")
    a(f"s_mov_b32 s{sCnt}, 0")
    if QPOS:
        a(f"s_waitcnt vmcnt({4*(R-QPOS)})")
    a.label("L_k")
    for s in range(R):
        def ksw():
            if (NT - R) % R == s:
                a(f"s_cmp_lg_u32 s{sCnt}, {NT-R}")
                a(f"s_cbranch_scc1 L_ksw")
                a("s_mov_b64 s[8:9], s[12:13]")
                a(f"v_mov_b32 v{vA0}, v{vVl}")
                a.label("L_ksw")
        if FINE:
            ksw()
            for t in range(4):
                a(f"s_waitcnt vmcnt({(EFF or INFL)-1})")
                a(f"v_mfma_f32_16x16x32_bf16 {v4(vD+4*t)}, {buf(s,t)}, {v4(vQ)}, 0")
                ld1(s, t)
            a("s_nop 2")
        else:
            for t in range(4):
                a(f"s_waitcnt vmcnt({INFL-1-t})")
                a(f"v_mfma_f32_16x16x32_bf16 {v4(vD+4*t)}, {buf(s,t)}, {v4(vQ)}, 0")
            ksw()
            ld(s)
            a("s_nop 0")
        for q in range(4):
            for t in range(4):
                op = "v_mul_f32_dpp" if q == 0 else "v_fmac_f32_dpp"
                a(f"{op} v{vS+t}, v{vD+4*t+q}, v{vC} quad_perm:[{q},{q},{q},{q}] {DPPM}")
        a(f"v_max3_f32 v{vMs}, v{vMs}, v{vS}, v{vS+1}")
        a(f"ds_write_b128 v{vSa}, {v4(vS)}")
        a(f"v_max3_f32 v{vMs}, v{vMs}, v{vS+2}, v{vS+3}")
        a(f"v_add_u32 v{vSa}, 1024, v{vSa}")
        a(f"s_add_u32 s{sCnt}, s{sCnt}, 1")
        if (NT - 1) % R == s:
            if s == R - 1:
                a(f"s_cmp_lg_u32 s{sCnt}, {NT}")
                a("s_cbranch_scc1 L_k")
            else:
                a(f"s_cmp_eq_u32 s{sCnt}, {NT}")
                a("s_cbranch_scc1 L_kx")
    if (NT - 1) % R != R - 1:
        a("s_branch L_k")
    a.label("L_kx")
    a(f"v_subrev_u32 v{vSa}, {NT*1024}, v{vSa}")
    for sw in ("v_permlane16_swap_b32", "v_permlane32_swap_b32"):
        a(f"v_mov_b32 v{vX}, v{vMs}")
        a("s_nop 1")
        a(f"{sw} v{vMs}, v{vX}")
        a("s_nop 0")
        a(f"v_max_f32 v{vMs}, v{vMs}, v{vX}")
    a(f"ds_write_b32 v{vWs}, v{vMs}")
    a("s_waitcnt lgkmcnt(0)")
    a("s_barrier")
    for j in range(NS // 4):
        a(f"ds_read_b128 {v4(vD+4*j)}, v{vRs} offset:{16*j}")
    for j in range(NS // 4):
        a(f"ds_read_b128 {v4(vD+8+4*j)}, v{vRm} offset:{16*j}")
    a(f"ds_read_b128 {v4(vSn)}, v{vSa}")
    a("s_waitcnt lgkmcnt(1)")
    def maxn(dst, b):
        if NW == 1:
            a(f"v_mov_b32 v{dst}, v{b}")
        elif NW == 2:
            a(f"v_max_f32 v{dst}, v{b}, v{b+1}")
        else:
            a(f"v_max3_f32 v{dst}, v{b}, v{b+1}, v{b+2}")
            t = 3
            while t < NW:
                if t + 1 < NW:
                    a(f"v_max3_f32 v{dst}, v{dst}, v{b+t}, v{b+t+1}"); t += 2
                else:
                    a(f"v_max_f32 v{dst}, v{dst}, v{b+t}"); t += 1
    maxn(vMs, vD)
    maxn(vM, vD + 8)
    a(f"v_min_u32 v{vM}, -2, v{vM}")
    a(f"s_mov_b32 s{sCnt}, {NT}")
    s0 = NT % R
    a.label("L_v")
    for j in range(R):
        s = (s0 + j) % R
        if TRIG > 0 and (NT - TRIG) % R == j:
            a(f"s_cmp_lg_u32 s{sCnt}, s{sTrig}")
            a("s_cbranch_scc1 L_notrig")
            a("s_barrier")
            a.label("L_notrig")
        a("s_waitcnt lgkmcnt(0)")
        for t in range(4):
            a(f"v_sub_f32 v{vS+t}, v{vSn+t}, v{vMs}")
        a(f"ds_read_b128 {v4(vSn)}, v{vSa} offset:1024")
        a(f"v_add_u32 v{vSa}, 1024, v{vSa}")
        for t in range(4):
            a(f"v_exp_f32 v{vS+t}, v{vS+t}")
        a(f"s_sub_u32 s{sCnt}, s{sCnt}, 1")
        for t in range(4):
            a(f"v_cvt_pk_bf16_f32 v{vS+t}, v{vS+t}, v{vS+t}")
        for t in range(4):
            for q in range(4):
                a(f"v_and_b32 v{vPd+4*t+q}, v{vS+t}, v{vMask+q}")
        for t in range(4):
            a(f"v_mfma_f32_16x16x32_bf16 {v4(vLa)}, {v4(vPd+4*t)}, {v4(vOne)}, {v4(vLa)}")
        last = (NT - 1) % R == j
        if last:
            a(f"s_cmp_eq_u32 s{sCnt}, 0")
        for t in range(4):
            a(f"s_waitcnt vmcnt({(EFF or INFL)-1 if FINE else INFL-1-t})")
            a(f"v_mfma_f32_16x16x32_bf16 {v4(vO)}, {v4(vPd+4*t)}, {buf(s,t)}, {v4(vO)}")
            if last and t == 3:
                a("s_cbranch_scc1 L_vx")
            if FINE:
                ld1(s, t)
        if not FINE:
            ld(s)
    a("s_branch L_v")
    a.label("L_vx")
    base = vTmp
    lb = base; ob = base + NS
    a(f"ds_write_b32 v{vWm}, v{vLa} offset:{OFF_L-OFF_M}")
    a("s_nop 5")
    stamp(4)
    a(f"ds_write_b128 v{vWa}, {v4(vO)}")
    a("s_mov_b64 exec, 1")
    a(f"ds_add_rtn_u32 v{vArr}, v{vDa}, v{vI1}")
    a("s_mov_b64 exec, -1")
    for w in range(NW):
        a(f"ds_read_b128 {v4(ob+4*w)}, v{vRa} offset:{1024*w}")
    for j in range(NS // 4):
        a(f"ds_read_b128 {v4(lb+4*j)}, v{vRm} offset:{OFF_L-OFF_M+16*j}")
    a(f"ds_read_b32 v{vCnt}, v{vDa} offset:4")
    nrd = NW + NS // 4 + 1
    a(f"s_waitcnt lgkmcnt({nrd})")
    a(f"v_readfirstlane_b32 s{sT}, v{vArr}")
    a(f"s_cmp_lg_u32 s{sT}, {NW-1}")
    a("s_cbranch_scc1 L_end")
    stamp(2)
    for w in range(1, NW):
        a(f"s_waitcnt lgkmcnt({NW-1-w+NS//4+1})")
        src = ob if w == 1 else vO
        a(f"v_pk_add_f32 v[{vO}:{vO+1}], v[{src}:{src+1}], v[{ob+4*w}:{ob+4*w+1}]")
        a(f"v_pk_add_f32 v[{vO+2}:{vO+3}], v[{src+2}:{src+3}], v[{ob+4*w+2}:{ob+4*w+3}]")
    a("s_waitcnt lgkmcnt(0)")
    a(f"v_cmp_ne_u32 vcc, s{sXc}, v{vCnt}")
    for q in range(4):
        a(f"v_min_u32 v{vO+q}, -2, v{vO+q}")
    if NW == 1:
        a(f"v_mov_b32 v{vLs}, v{lb}")
    else:
        a(f"v_add_f32 v{vLs}, v{lb}, v{lb+1}")
    for w in range(2, NW):
        a(f"v_add_f32 v{vLs}, v{vLs}, v{lb+w}")
    a(f"v_min_u32 v{vLs}, -2, v{vLs}")
    a("s_cbranch_vccnz L_far")
    a(f"global_store_dwordx4 v{vR1}, {v4(vO)}, s[38:39]")
    a(f"global_store_dwordx2 v{vR2}, v[{vM}:{vM+1}], s[38:39] offset:1024")
    a.label("L_pubd")
    if TRIG == 0:
        a("s_barrier")
    if stamps:
        stamp(3)
        a("s_waitcnt vmcnt(0)")
        stamp(5)
        stamp_out(0, [0, 1, 2, 3, 4, 5, 6])
        a(f"s_cmp_eq_u32 s{sSp}, 0")
        a("s_cbranch_scc1 L_end")
        a(f"global_store_dwordx2 v{vX}, v[{vTmp+10}:{vTmp+11}], s[38:39] offset:72")
    a("s_endpgm")
    a.label("L_far")
    a(f"s_mov_b32 s{sGc}, 0x100000")
    a.label("L_cnt2")
    a(f"v_cmp_eq_u32 vcc, 0, v{vCnt}")
    a("s_cbranch_vccz L_pub2")
    a(f"global_load_dword v{vCnt}, v{vDbg}, s[36:37] sc1")
    a("s_waitcnt vmcnt(0)")
    a(f"s_sub_u32 s{sGc}, s{sGc}, 1")
    a("s_cbranch_scc0 L_cnt2")
    a.label("L_pub2")
    a(f"global_store_dwordx4 v{vR1}, {v4(vO)}, s[38:39] sc1")
    a(f"global_store_dwordx2 v{vR2}, v[{vM}:{vM+1}], s[38:39] offset:1024 sc1")
    a("s_branch L_pubd")

    a.label("L_helper")
    a(f"s_lshl_b32 s{sT}, s{sG}, 2")
    a(f"v_mov_b32 v{vDbg}, s{sT}")
    a(f"v_mov_b32 v{vDa}, {OFF_D}")
    a(f"v_mov_b32 v{vM}, 0")
    a(f"v_mov_b32 v{vM+1}, 0")
    a(f"s_lshr_b32 s{sRec}, s21, 7")
    a(f"v_lshl_add_u32 v{vR1}, v{vL}, 4, s{sRec}")
    a(f"v_mov_b32 v{vR2}, s{sRec}")
    a(f"s_cmp_eq_u32 s{sSp}, 0")
    a("s_cbranch_scc1 L_hcons")
    a(f"ds_write_b64 v{vDa}, v[{vM}:{vM+1}]")
    a("s_waitcnt lgkmcnt(0)")
    a("s_barrier")
    if SFLAG:
        a(f"s_load_dword s{sT2}, s[36:37], s{sT} glc")
        a("s_waitcnt lgkmcnt(0)")
        a(f"v_mov_b32 v{vCnt}, s{sT2}")
    else:
        a(f"global_load_dword v{vCnt}, v{vDbg}, s[36:37] sc1")
        a("s_waitcnt vmcnt(0)")
    a(f"ds_write_b32 v{vDa}, v{vCnt} offset:4")
    if LATE:
        a("s_barrier")
    if PRE or LATE:
        a(f"v_cmp_eq_u32 vcc, 0, v{vCnt}")
        a("s_cbranch_vccnz L_end")
        if PRE or LATE == 2:
            a(f"global_load_dwordx4 {v4(vPd)}, v{vR1}, s[38:39] sc1")
        a(f"global_load_dword v{vX}, v{vR2}, s[38:39] offset:1024 sc1")
    a("s_endpgm")
    a.label("L_hcons")
    a(f"v_add_u32 v{vR1}, 4096, v{vR1}")
    a(f"v_add_u32 v{vR3}, 8192, v{vR1}")
    a(f"v_lshrrev_b32 v{vY}, 5, v{vL}")
    a(f"v_lshl_add_u32 v{vR2}, v{vY}, 3, s{sRec}")
    a(f"v_and_b32 v{vX}, 7, v{vL}")
    a(f"v_lshl_add_u32 v{vR2}, v{vX}, 11, v{vR2}")
    for q in range(4):
        a(f"v_mov_b32 v{vPd+q}, -1")
    if HS:
        a(f"s_sleep {HS}")
    a(f"global_store_dwordx2 v{vR2}, v[{vPd}:{vPd+1}], s[38:39] offset:1024 sc1")
    for s in range(8):
        a(f"global_store_dwordx4 v{vR1 if s<4 else vR3}, {v4(vPd)}, s[38:39] offset:{(s%4)*2048-4096} sc1")
    a(f"v_lshlrev_b32 v{vOut}, 8, v{vY}")
    a(f"v_and_b32 v{vX}, 15, v{vL}")
    a(f"v_lshl_add_u32 v{vOut}, v{vX}, 4, v{vOut}")
    a(f"v_bfe_u32 v{vX}, v{vL}, 4, 1")
    a(f"v_lshl_add_u32 v{vOut}, v{vX}, 3, v{vOut}")
    a(f"v_add_u32 v{vOut}, s{sG512}, v{vOut}")
    a(f"s_getreg_b32 s{sXc}, hwreg(HW_REG_XCC_ID, 0, 4)")
    a(f"s_or_b32 s{sXc}, s{sXc}, 0x100")
    a(f"v_mov_b32 v{vM+1}, s{sXc}")
    a("s_waitcnt vmcnt(0)")
    a(f"global_store_dword v{vDbg}, v{vM+1}, s[36:37] sc1")
    a(f"ds_write_b64 v{vDa}, v[{vM}:{vM+1}]")
    a(f"s_mov_b32 s{sGc}, 0x100000")
    a("s_waitcnt lgkmcnt(0)")
    a("s_barrier")
    pO = base; pML = base + 32; vAcc = base + 36; vMx = base + 40; vG = base + 41; vT2 = base + 42
    if PRE:
        a(f"global_load_dwordx4 {v4(pO)}, v{vR1}, s[38:39] offset:-4096 sc1")
        a(f"global_load_dwordx2 v[{pML}:{pML+1}], v{vR2}, s[38:39] offset:1024 sc1")
        a("s_waitcnt vmcnt(0)")
    a("s_barrier")
    a.label("L_poll")
    a(f"global_load_dwordx2 v[{pML}:{pML+1}], v{vR2}, s[38:39] offset:1024 sc1")
    if LEAN:
        a("s_waitcnt vmcnt(0)")
        a(f"v_max_u32 v{vMx}, v{pML}, v{pML+1}")
        a(f"v_cmp_eq_u32 vcc, -1, v{vMx}")
        a("s_cbranch_vccnz L_again")
    for s in range(8):
        a(f"global_load_dwordx4 {v4(pO+4*s)}, v{vR1 if s<4 else vR3}, s[38:39] offset:{(s%4)*2048-4096} sc1")
    pos = [0]; wr = {}; tr = {}
    def emit(txt, w=None, rd=(), dpp=False, trans=False):
        need = 0
        for x in rd:
            if dpp and x in wr:
                need = max(need, 2 - (pos[0] - wr[x] - 1))
            if not trans and x in tr:
                need = max(need, 1 - (pos[0] - tr[x] - 1))
        if need > 0:
            a(f"s_nop {need-1}"); pos[0] += need
        a(txt)
        if w is not None:
            wr[w] = pos[0]
            if trans: tr[w] = pos[0]
            else: tr.pop(w, None)
        pos[0] += 1
    def wait(n): emit(f"s_waitcnt vmcnt({n})")
    def dppop(op, d, ctl): emit(f"{op} v{d}, v{d}, v{d} {ctl} {DPPM}", d, (d,), dpp=True)
    def chk(s):
        b = pO + 4 * s
        emit(f"v_max3_u32 v{vMx}, v{vMx}, v{b}, v{b+1}", vMx, (vMx,))
        emit(f"v_max3_u32 v{vMx}, v{vMx}, v{b+2}, v{b+3}", vMx, (vMx,))
    def acc(s):
        b = pO + 4 * s
        for q in range(4):
            op = "v_mul_f32_dpp" if s == 0 else "v_fmac_f32_dpp"
            emit(f"{op} v{vAcc+q}, v{vG}, v{b+q} row_newbcast:{s} {DPPM}", vAcc + q, (vG, vAcc + q), dpp=True)
    if LEAN:
        emit(f"v_max_f32_dpp v{vG}, v{pML}, v{pML} quad_perm:[1,0,3,2] {DPPM}", vG)
        dppop("v_max_f32_dpp", vG, "quad_perm:[2,3,0,1]")
        dppop("v_max_f32_dpp", vG, "row_half_mirror")
        emit(f"v_sub_f32 v{vG}, v{pML}, v{vG}", vG, (vG,))
        emit(f"v_exp_f32 v{vG}, v{vG}", vG, (vG,), trans=True)
        emit(f"v_mul_f32 v{vT2}, v{vG}, v{pML+1}", vT2, (vG,))
        dppop("v_add_f32_dpp", vT2, "quad_perm:[1,0,3,2]")
        dppop("v_add_f32_dpp", vT2, "quad_perm:[2,3,0,1]")
        dppop("v_add_f32_dpp", vT2, "row_half_mirror")
        emit(f"v_rcp_f32 v{vT2}, v{vT2}", vT2, (vT2,), trans=True)
        emit(f"v_mul_f32 v{vG}, v{vG}, v{vT2}", vG, (vT2,))
        for s in range(8):
            wait(7 - s)
            acc(s); chk(s)
        emit(f"v_cmp_eq_u32 vcc, -1, v{vMx}")
    else:
        wait(8)
        emit(f"v_max_f32_dpp v{vG}, v{pML}, v{pML} quad_perm:[1,0,3,2] {DPPM}", vG)
        emit(f"v_max_u32 v{vMx}, v{pML}, v{pML+1}", vMx)
        wait(7)
        dppop("v_max_f32_dpp", vG, "quad_perm:[2,3,0,1]")
        chk(0)
        dppop("v_max_f32_dpp", vG, "row_half_mirror")
        emit(f"v_sub_f32 v{vG}, v{pML}, v{vG}", vG, (vG,))
        emit(f"v_exp_f32 v{vG}, v{vG}", vG, (vG,), trans=True)
        wait(6)
        emit(f"v_mul_f32 v{vT2}, v{vG}, v{pML+1}", vT2, (vG,))
        chk(1)
        acc(0)
        dppop("v_add_f32_dpp", vT2, "quad_perm:[1,0,3,2]")
        acc(1)
        wait(5)
        dppop("v_add_f32_dpp", vT2, "quad_perm:[2,3,0,1]")
        acc(2); chk(2)
        wait(4)
        dppop("v_add_f32_dpp", vT2, "row_half_mirror")
        acc(3)
        emit(f"v_rcp_f32 v{vT2}, v{vT2}", vT2, (vT2,), trans=True)
        chk(3)
        for s in range(4, 8):
            wait(7 - s)
            acc(s); chk(s)
        emit(f"v_cmp_eq_u32 vcc, -1, v{vMx}")
        for q in range(4):
            emit(f"v_mul_f32 v{vAcc+q}, v{vT2}, v{vAcc+q}", vAcc + q, (vT2,))
    a(f"v_cvt_pk_bf16_f32 v{vAcc}, v{vAcc}, v{vAcc+1}")
    a(f"v_cvt_pk_bf16_f32 v{vAcc+1}, v{vAcc+2}, v{vAcc+3}")
    a("s_cbranch_vccnz L_again")
    a(f"global_store_dwordx2 v{vOut}, v[{vAcc}:{vAcc+1}], s[34:35]")
    if stamps:
        stamp(0)
        a("s_waitcnt vmcnt(0)")
        stamp(1)
        a(f"s_sub_u32 s44, 0x100000, s{sGc}")
        a("s_mov_b32 s45, 0")
        stamp_out(8, [0, 1, 2])
    a("s_endpgm")
    a.label("L_again")
    a(f"s_sub_u32 s{sGc}, s{sGc}, 1")
    a("s_cbranch_scc0 L_poll")
    a.label("L_end")
    a("s_endpgm")
    out = a.text()
    if spin is not None:
        out += spin_kernel(spin)
    out += desc(main, total_decl, 72, accum)
    if spin is not None:
        out += desc("spin_kernel", 64, 32, 64)
    return out

if __name__ == "__main__":
    p = argparse.ArgumentParser()
    p.add_argument("--nw", type=int, default=4)
    p.add_argument("--r", type=int, default=2)
    p.add_argument("--trig", type=int, default=0)
    p.add_argument("--coarse", action="store_true")
    p.add_argument("--eff", type=int, default=0)
    p.add_argument("--qpos", type=int, default=1)
    p.add_argument("--nopre", action="store_true")
    p.add_argument("--lean", action="store_true")
    p.add_argument("--hs", type=int, default=0)
    p.add_argument("--sflag", action="store_true")
    p.add_argument("--late", type=int, default=0)
    p.add_argument("--flag", default="nt")
    p.add_argument("--xmap", default="xcd")
    p.add_argument("--stamps", action="store_true")
    p.add_argument("--spin", default=None)
    p.add_argument("-o", default="-")
    x = p.parse_args()
    s = gen(x.nw, x.r, x.flag, x.xmap, x.stamps, None if x.spin is None else tuple(int(t) for t in x.spin.split(",")),
            x.trig, not x.coarse, x.eff, x.qpos, not x.nopre, x.hs, x.lean, x.sflag, x.late)
    open(x.o, "w").write(s) if x.o != "-" else sys.stdout.write(s)
```

```python
import sys, math, argparse
from gen import Asm, desc, HDR, NAME, SCALE
from gen2 import spin_kernel

def gen(NW=4, R=2, flag="nt", xmap="xcd", stamps=False, spin=None, TRIG=0, FINE=True, EFF=0, QPOS=1, PRE=True, HS=0, LEAN=False, SFLAG=False, LATE=0, SQ=0, ABL='', PSLP=0, FSTR=4, CF='sc1', HG=0, F1=8, F2=4, NA=6, RB=0, NP=1, CHK1=False):
    NWG = 256
    TB = 4096
    NT = 64 // NW
    NS = max(NW, 4)
    OFF_O = 65536
    OFF_M = OFF_O + NW * 1024
    OFF_L = OFF_M + 2 * NS * 4
    OFF_D = OFF_L + 2 * NS * 4
    OFF_Q = OFF_D + 16
    LDS = max(OFF_Q + 512, 84000)
    main = NAME + "_kernel"
    a = Asm()
    r = 1
    def alloc(n, align=1):
        nonlocal r
        r = (r + align - 1) // align * align
        b = r
        r += n
        return b
    vL = alloc(1); vW = alloc(1); vC = alloc(1)
    vX = alloc(1); vY = alloc(1); vR1 = alloc(1); vR2 = alloc(1); vR3 = alloc(1)
    vA0 = alloc(1); vVl = alloc(1); vCnt = alloc(1); vDbg = alloc(1); vI1 = alloc(1)
    vSa = alloc(1); vWa = alloc(1); vRa = alloc(1); vWm = alloc(1); vRm = alloc(1); vWs = alloc(1); vRs = alloc(1); vMs = alloc(1)
    vDa = alloc(1); vOut = alloc(1); vArr = alloc(1)
    vM = alloc(2, 2); vLs = vM + 1
    vQ = alloc(4, 4); vMask = alloc(4, 4); vPd = alloc(16, 4); vO = alloc(4, 4); vLa = alloc(4, 4); vOne = alloc(4, 4)
    vS = alloc(4, 4); vSn = alloc(4, 4)
    vD = alloc(16, 4)
    vB = alloc(R * 16, 4)
    vTmp = alloc(max(NS + 4 * NW, 44), 4)
    nv = r
    assert nv <= 256, nv
    total_decl = (nv + 7) // 8 * 8
    accum = (total_decl + 3) // 4 * 4
    def v4(b): return f"v[{b}:{b+3}]"
    def buf(s, t): return v4(vB + (s * 4 + t) * 4)
    sG, sSp, sXc, sG512, sWv = 16, 17, 18, 19, 20
    sRec, sTrig, sCnt, sGc, sT, sT2, sStep = 23, 24, 25, 27, 28, 29, 30
    sF1, sF2, sDone = 14, 15, 26
    AREA_B = 0x80000
    PLAIN = (CF == '')
    def ld1(s, t):
        a(f"buffer_load_dwordx4 {buf(s,t)}, v{vA0}, s[8:11], 0 offen offset:{t*1024} {flag}")
        if t == 3:
            a(f"v_add_u32 v{vA0}, s{sStep}, v{vA0}")
    def ld(s):
        for t in range(4):
            ld1(s, t)
    DPPM = "row_mask:0xf bank_mask:0xf"
    NTH = (NW + NP) * 64
    W = 4 // NP
    hdr = HDR
    if spin is not None:
        hdr += f"; @launch kernel={main} grid=({NWG},1,1) block=({NTH},1,1) lds={LDS}\n"
        hdr += f"; @launch kernel=spin_kernel grid=(1,1,1) block=(64,1,1) lds=0\n"
    else:
        hdr += f"; @launch grid=({NWG},1,1) block=({NTH},1,1) lds={LDS}\n"
    a.raw(hdr + '.amdgcn_target "amdgcn-amd-amdhsa--gfx950"\n.text')
    a.raw(f".globl {main}\n.p2align 8\n.type {main},@function")
    a.label(main)
    a("s_load_dwordx2 s[8:9], s[0:1], 8")
    a("s_load_dwordx2 s[4:5], s[0:1], 0")
    def stamp(i):
        if stamps:
            a(f"s_memrealtime s[{40+2*i}:{41+2*i}]")
            a("s_waitcnt lgkmcnt(0)")
    def stamp_out(slot0, idx):
        a("s_getreg_b32 s52, hwreg(HW_REG_XCC_ID)")
        a("s_getreg_b32 s53, hwreg(HW_REG_HW_ID)")
        a("s_lshl_b32 s22, s2, 7")
        a("s_add_u32 s22, s22, 0x8000000")
        a(f"v_mov_b32 v{vX}, s22")
        for i in idx:
            a(f"v_mov_b32 v{vTmp+2*i}, s{40+2*i}")
            a(f"v_mov_b32 v{vTmp+2*i+1}, s{41+2*i}")
        a("s_mov_b64 exec, 1")
        for i in idx:
            a(f"global_store_dwordx2 v{vX}, v[{vTmp+2*i}:{vTmp+2*i+1}], s[38:39] offset:{8*(i+slot0)}")
    if stamps:
        a("s_memrealtime s[40:41]")
    assert NW == 4 and not SQ
    a(f"v_readfirstlane_b32 s{sWv}, v0")
    a(f"s_lshr_b32 s{sT}, s2, 3")
    a("s_and_b32 s21, s2, 7")
    if xmap == "rot":
        a(f"s_add_u32 s21, s21, s{sT}")
        a("s_and_b32 s21, s21, 7")
        a(f"s_lshl_b32 s{sT2}, s{sT}, 3")
        a(f"s_or_b32 s21, s21, s{sT2}")
    else:
        a("s_lshl_b32 s21, s21, 5")
        a(f"s_or_b32 s21, s21, s{sT}")
    a(f"s_cmp_ge_u32 s{sT}, 32")
    a("s_cbranch_scc1 L_end")
    a("s_lshl_b32 s21, s21, 18")
    a(f"v_and_b32 v{vA0}, 0x1cc, v0")
    a(f"v_and_b32 v{vX}, 48, v0")
    a(f"v_and_b32 v{vY}, 3, v0")
    a(f"v_lshlrev_b32 v{vY}, 4, v{vY}")
    a(f"v_lshl_or_b32 v{vX}, v{vX}, 2, v{vY}")
    a(f"v_lshl_or_b32 v{vA0}, v{vA0}, 6, v{vX}")
    a(f"v_add_u32 v{vA0}, s21, v{vA0}")
    a("s_add_u32 s10, s21, 0x40000")
    a("s_mov_b32 s11, 0x20000")
    a(f"s_bitcmp1_b32 s{sWv}, 8")
    a("s_cbranch_scc1 L_helper")
    a("s_waitcnt lgkmcnt(0)")
    if stamps:
        a("s_memrealtime s[42:43]")
    for t in range(4):
        a(f"buffer_load_dwordx4 {buf(0,t)}, v{vA0}, s[8:11], 0 offen offset:{t*1024} {flag}")
    a(f"s_movk_i32 s{sStep}, {NW*TB}")
    a(f"s_lshr_b32 s{sG512}, s21, 12")
    a(f"s_andn2_b32 s{sG512}, s{sG512}, 0x1ff")
    a(f"v_add_u32 v{vA0}, s{sStep}, v{vA0}")
    a(f"v_bfe_u32 v{vY}, v0, 3, 1")
    a(f"v_lshl_add_u32 v{vX}, v{vY}, 8, v{vX}")
    a(f"v_add_u32 v{vX}, s{sG512}, v{vX}")
    a(f"global_load_dwordx4 {v4(vQ)}, v{vX}, s[4:5]")
    for s in range(1, R):
        ld(s)
    a("s_load_dwordx8 s[32:39], s[0:1], 16")
    a(f"s_lshr_b32 s{sWv}, s{sWv}, 6")
    a(f"s_lshr_b32 s{sG}, s21, 21")
    a(f"s_bfe_u32 s{sSp}, s21, 0x30012")
    a(f"v_lshrrev_b32 v{vW}, 6, v0")
    a(f"v_and_b32 v{vL}, 63, v0")
    QPOS = 1
    INFL = 4 * R
    LNS = int(math.log2(NS * 4))
    a(f"v_lshlrev_b32 v{vRs}, {LNS}, v{vY}")
    a(f"v_add_u32 v{vRs}, {OFF_M}, v{vRs}")
    a(f"v_lshl_add_u32 v{vWs}, v{vW}, 2, v{vRs}")
    a(f"v_lshlrev_b32 v{vVl}, 4, v{vL}")
    a(f"v_lshl_add_u32 v{vSa}, v{vW}, {int(math.log2(NT*1024))}, v{vVl}")
    a(f"v_add_u32 v{vRa}, {OFF_O}, v{vVl}")
    a(f"v_lshl_add_u32 v{vWa}, v{vW}, 10, v{vRa}")
    a(f"s_lshr_b32 s{sRec}, s21, 7")
    a(f"v_add_u32 v{vR1}, s{sRec}, v{vVl}")
    a(f"v_lshl_add_u32 v{vVl}, v{vW}, 12, v{vVl}")
    a(f"v_add_u32 v{vVl}, s21, v{vVl}")
    a(f"v_lshrrev_b32 v{vY}, 5, v{vL}")
    a(f"v_lshl_add_u32 v{vR2}, v{vY}, 3, s{sRec}")
    a(f"v_lshlrev_b32 v{vRm}, {LNS}, v{vY}")
    a(f"v_add_u32 v{vRm}, {OFF_M}, v{vRm}")
    a(f"v_lshl_add_u32 v{vWm}, v{vW}, 2, v{vRm}")
    a(f"s_mul_i32 s{sT}, s{sG}, {FSTR}")
    a(f"v_mov_b32 v{vDbg}, s{sT}")
    a(f"v_mov_b32 v{vI1}, 1")
    a(f"v_mov_b32 v{vDa}, {OFF_D}")
    a(f"s_getreg_b32 s{sXc}, hwreg(HW_REG_XCC_ID, 0, 4)")
    a(f"s_or_b32 s{sXc}, s{sXc}, 0x100")
    if TRIG > 0:
        a(f"s_cmp_eq_u32 s{sSp}, 0")
        a(f"s_cselect_b32 s{sTrig}, {TRIG}, {TRIG if LATE else -1}")
    a(f"v_mov_b32 v{vM}, 0")
    a(f"v_mov_b32 v{vM+1}, 0")
    a(f"ds_write_b64 v{vDa}, v[{vM}:{vM+1}]")
    a(f"s_cmp_eq_u32 s{sSp}, 0")
    a(f"s_cselect_b32 s{sT}, 1, s{sWv}")
    a(f"s_cmp_eq_u32 s{sT}, 0")
    a(f"s_cselect_b32 s{sF1}, {F1}, -1")
    a(f"s_cselect_b32 s{sF2}, {F2}, -1")
    a(f"v_mov_b32 v{vC}, 0x{SCALE:08x}")
    a(f"v_and_b32 v{vX}, 1, v{vL}")
    a(f"v_lshlrev_b32 v{vX}, 4, v{vX}")
    a(f"v_mov_b32 v{vY}, 0xffff")
    a(f"v_lshlrev_b32 v{vX}, v{vX}, v{vY}")
    a(f"v_bfe_u32 v{vY}, v{vL}, 1, 2")
    for q in range(4):
        a(f"v_cmp_eq_u32 vcc, {q}, v{vY}")
        a("s_nop 1")
        a(f"v_cndmask_b32 v{vMask+q}, 0, v{vX}, vcc")
    for q in range(4):
        a(f"v_mov_b32 v{vO+q}, 0")
        a(f"v_mov_b32 v{vLa+q}, 0")
        a(f"v_mov_b32 v{vOne+q}, 0x3f803f80")
    a(f"v_mov_b32 v{vMs}, 0xff7fffff")
    a(f"s_mov_b32 s{sCnt}, 0")
    if SQ:
        a(f"v_lshlrev_b32 v{vX}, 2, v{vL}")
        a(f"v_lshl_add_u32 v{vX}, v{vW}, 7, v{vX}")
        a(f"v_add_u32 v{vX}, {OFF_Q}, v{vX}")
        a("s_waitcnt lgkmcnt(0)")
        for i in range(32):
            a(f"v_writelane_b32 v{vY}, s{64+i}, {i}")
        a("s_mov_b32 exec_hi, 0")
        a(f"ds_write_b32 v{vX}, v{vY}")
        a("s_mov_b64 exec, -1")
        a("s_waitcnt lgkmcnt(0)")
        a("s_barrier")
        a(f"ds_read_b128 {v4(vQ)}, v{vR3}")
        a("s_waitcnt lgkmcnt(0)")
    elif QPOS:
        a(f"s_waitcnt vmcnt({4*(R-QPOS)}) lgkmcnt(0)")
    a.label("L_k")
    for s in range(R):
        def ksw():
            if (NT - R) % R == s:
                a(f"s_cmp_lg_u32 s{sCnt}, {NT-R}")
                a(f"s_cbranch_scc1 L_ksw")
                a("s_mov_b64 s[8:9], s[32:33]")
                a(f"v_mov_b32 v{vA0}, v{vVl}")
                a.label("L_ksw")
        if FINE:
            ksw()
            for t in range(4):
                a(f"s_waitcnt vmcnt({(EFF or INFL)-1})")
                a(f"v_mfma_f32_16x16x32_bf16 {v4(vD+4*t)}, {buf(s,t)}, {v4(vQ)}, 0")
                ld1(s, t)
            a("s_nop 2")
        else:
            for t in range(4):
                a(f"s_waitcnt vmcnt({INFL-1-t})")
                a(f"v_mfma_f32_16x16x32_bf16 {v4(vD+4*t)}, {buf(s,t)}, {v4(vQ)}, 0")
            ksw()
            ld(s)
            a("s_nop 0")
        for q in range(4 if "X" not in ABL else 0):
            for t in range(4):
                op = "v_mul_f32_dpp" if q == 0 else "v_fmac_f32_dpp"
                a(f"{op} v{vS+t}, v{vD+4*t+q}, v{vC} quad_perm:[{q},{q},{q},{q}] {DPPM}")
        a(f"v_max3_f32 v{vMs}, v{vMs}, v{vS}, v{vS+1}")
        a(f"ds_write_b128 v{vSa}, {v4(vS)}")
        a(f"v_max3_f32 v{vMs}, v{vMs}, v{vS+2}, v{vS+3}")
        a(f"v_add_u32 v{vSa}, 1024, v{vSa}")
        a(f"s_add_u32 s{sCnt}, s{sCnt}, 1")
        if (NT - 1) % R == s:
            if s == R - 1:
                a(f"s_cmp_lg_u32 s{sCnt}, {NT}")
                a("s_cbranch_scc1 L_k")
            else:
                a(f"s_cmp_eq_u32 s{sCnt}, {NT}")
                a("s_cbranch_scc1 L_kx")
    if (NT - 1) % R != R - 1:
        a("s_branch L_k")
    a.label("L_kx")
    a(f"v_subrev_u32 v{vSa}, {NT*1024}, v{vSa}")
    for sw in ("v_permlane16_swap_b32", "v_permlane32_swap_b32"):
        a(f"v_mov_b32 v{vX}, v{vMs}")
        a("s_nop 1")
        a(f"{sw} v{vMs}, v{vX}")
        a("s_nop 0")
        a(f"v_max_f32 v{vMs}, v{vMs}, v{vX}")
    a(f"ds_write_b32 v{vWs}, v{vMs}")
    a("s_waitcnt lgkmcnt(0)")
    if "C" not in ABL:
        a("s_barrier")
    for j in range(NS // 4):
        a(f"ds_read_b128 {v4(vD+4*j)}, v{vRs} offset:{16*j}")
    for j in range(NS // 4):
        a(f"ds_read_b128 {v4(vD+8+4*j)}, v{vRm} offset:{16*j}")
    a(f"ds_read_b128 {v4(vSn)}, v{vSa}")
    a("s_waitcnt lgkmcnt(1)")
    def maxn(dst, b):
        if NW == 1:
            a(f"v_mov_b32 v{dst}, v{b}")
        elif NW == 2:
            a(f"v_max_f32 v{dst}, v{b}, v{b+1}")
        else:
            a(f"v_max3_f32 v{dst}, v{b}, v{b+1}, v{b+2}")
            t = 3
            while t < NW:
                if t + 1 < NW:
                    a(f"v_max3_f32 v{dst}, v{dst}, v{b+t}, v{b+t+1}"); t += 2
                else:
                    a(f"v_max_f32 v{dst}, v{dst}, v{b+t}"); t += 1
    maxn(vMs, vD)
    maxn(vM, vD + 8)
    a(f"v_min_u32 v{vM}, -2, v{vM}")
    a(f"s_mov_b32 s{sCnt}, {NT}")
    s0 = NT % R
    a.label("L_v")
    for j in range(R):
        s = (s0 + j) % R
        if TRIG > 0 and (NT - TRIG) % R == j:
            a(f"s_cmp_lg_u32 s{sCnt}, s{sTrig}")
            a("s_cbranch_scc1 L_notrig")
            a("s_barrier")
            a.label("L_notrig")
        if (NT - F1) % R == j:
            a(f"s_cmp_lg_u32 s{sCnt}, s{sF1}")
            a("s_cbranch_scc1 L_nf1")
            a(f"global_load_dword v{vCnt}, v{vDbg}, s[36:37] sc1")
            a.label("L_nf1")
        if (NT - F2) % R == j:
            a(f"s_cmp_lg_u32 s{sCnt}, s{sF2}")
            a("s_cbranch_scc1 L_nf2")
            a(f"ds_write_b32 v{vDa}, v{vCnt} offset:4")
            a.label("L_nf2")
        a("s_waitcnt lgkmcnt(0)")
        for t in range(4):
            a(f"v_sub_f32 v{vS+t}, v{vSn+t}, v{vMs}")
        a(f"ds_read_b128 {v4(vSn)}, v{vSa} offset:1024")
        a(f"v_add_u32 v{vSa}, 1024, v{vSa}")
        for t in range(4):
            a(f"v_exp_f32 v{vS+t}, v{vS+t}")
        a(f"s_sub_u32 s{sCnt}, s{sCnt}, 1")
        for t in range(4):
            a(f"v_cvt_pk_bf16_f32 v{vS+t}, v{vS+t}, v{vS+t}")
        for t in range(4 if "X" not in ABL else 0):
            for q in range(4):
                a(f"v_and_b32 v{vPd+4*t+q}, v{vS+t}, v{vMask+q}")
        for t in range(4 if "X" not in ABL else 0):
            a(f"v_mfma_f32_16x16x32_bf16 {v4(vLa)}, {v4(vPd+4*t)}, {v4(vOne)}, {v4(vLa)}")
        last = (NT - 1) % R == j
        if last:
            a(f"s_cmp_eq_u32 s{sCnt}, 0")
        for t in range(4):
            a(f"s_waitcnt vmcnt({(EFF or INFL)-1 if FINE else INFL-1-t})")
            a(f"v_mfma_f32_16x16x32_bf16 {v4(vO)}, {v4(vPd+4*t)}, {buf(s,t)}, {v4(vO)}")
            if last and t == 3:
                a("s_cbranch_scc1 L_vx")
            if FINE:
                ld1(s, t)
        if not FINE:
            ld(s)
    a("s_branch L_v")
    a.label("L_vx")
    base = vTmp
    lb = base; ob = base + NS
    a(f"ds_write_b32 v{vWm}, v{vLa} offset:{OFF_L-OFF_M}")
    a("s_nop 5")
    stamp(4)
    a(f"ds_write_b128 v{vWa}, {v4(vO)}")
    a("s_mov_b64 exec, 1")
    a(f"ds_add_rtn_u32 v{vArr}, v{vDa}, v{vI1}")
    a("s_mov_b64 exec, -1")
    for w in range(NW):
        a(f"ds_read_b128 {v4(ob+4*w)}, v{vRa} offset:{1024*w}")
    for j in range(NS // 4):
        a(f"ds_read_b128 {v4(lb+4*j)}, v{vRm} offset:{OFF_L-OFF_M+16*j}")
    a(f"ds_read_b32 v{vCnt}, v{vDa} offset:4")
    nrd = NW + NS // 4 + 1
    a(f"s_waitcnt lgkmcnt({nrd})")
    a(f"v_readfirstlane_b32 s{sT}, v{vArr}")
    a(f"s_cmp_lg_u32 s{sT}, {NW-1}")
    a("s_cbranch_scc1 L_end")
    stamp(2)
    for w in range(1, NW):
        a(f"s_waitcnt lgkmcnt({NW-1-w+NS//4+1})")
        src = ob if w == 1 else vO
        a(f"v_pk_add_f32 v[{vO}:{vO+1}], v[{src}:{src+1}], v[{ob+4*w}:{ob+4*w+1}]")
        a(f"v_pk_add_f32 v[{vO+2}:{vO+3}], v[{src+2}:{src+3}], v[{ob+4*w+2}:{ob+4*w+3}]")
    a("s_waitcnt lgkmcnt(0)")
    a(f"v_cmp_ne_u32 vcc, s{sXc}, v{vCnt}")
    for q in range(4):
        a(f"v_min_u32 v{vO+q}, -2, v{vO+q}")
    if NW == 1:
        a(f"v_mov_b32 v{vLs}, v{lb}")
    else:
        a(f"v_add_f32 v{vLs}, v{lb}, v{lb+1}")
    for w in range(2, NW):
        a(f"v_add_f32 v{vLs}, v{vLs}, v{lb+w}")
    a(f"v_min_u32 v{vLs}, -2, v{vLs}")
    a("s_cbranch_vccnz L_far")
    a(f"global_store_dwordx4 v{vR1}, {v4(vO)}, s[38:39]")
    a(f"global_store_dwordx2 v{vR2}, v[{vM}:{vM+1}], s[38:39] offset:1024")
    a.label("L_pubd")
    if TRIG == 0:
        a("s_barrier")
    if stamps:
        stamp(3)
        a("s_waitcnt vmcnt(0)")
        stamp(5)
        stamp_out(0, [0, 1, 2, 3, 4, 5, 6])
        a(f"s_cmp_eq_u32 s{sSp}, 0")
        a("s_cbranch_scc1 L_end")
        a(f"global_store_dwordx2 v{vX}, v[{vTmp+10}:{vTmp+11}], s[38:39] offset:72")
    a("s_endpgm")
    a.label("L_far")
    if PLAIN:
        a(f"v_add_u32 v{vR1}, {AREA_B}, v{vR1}")
        a(f"v_add_u32 v{vR2}, {AREA_B}, v{vR2}")
        a(f"global_store_dwordx4 v{vR1}, {v4(vO)}, s[38:39] sc1")
        a(f"global_store_dwordx2 v{vR2}, v[{vM}:{vM+1}], s[38:39] offset:1024 sc1")
        a(f"s_lshl_b32 s{sT}, 1, s{sSp}")
        a(f"v_mov_b32 v{vY}, s{sT}")
        a("s_waitcnt vmcnt(0)")
        a("s_mov_b64 exec, 1")
        a(f"global_atomic_or v{vDbg}, v{vY}, s[36:37] offset:128 sc1")
        a("s_mov_b64 exec, -1")
        a("s_branch L_pubd")
    else:
        a(f"s_mov_b32 s{sGc}, 0x100000")
        a.label("L_cnt2")
        a(f"v_cmp_eq_u32 vcc, 0, v{vCnt}")
        a("s_cbranch_vccz L_pub2")
        a(f"global_load_dword v{vCnt}, v{vDbg}, s[36:37] sc1")
        a("s_waitcnt vmcnt(0)")
        a(f"s_sub_u32 s{sGc}, s{sGc}, 1")
        a("s_cbranch_scc0 L_cnt2")
        a.label("L_pub2")
        a(f"global_store_dwordx4 v{vR1}, {v4(vO)}, s[38:39] sc1")
        a(f"global_store_dwordx2 v{vR2}, v[{vM}:{vM+1}], s[38:39] offset:1024 sc1")
        a("s_branch L_pubd")

    a.label("L_helper")
    a(f"s_bfe_u32 s{sSp}, s21, 0x30012")
    a("s_cbranch_scc1 L_end")
    a("s_load_dwordx8 s[32:39], s[0:1], 16")
    a(f"s_lshr_b32 s{sWv}, s{sWv}, 6")
    a(f"s_lshr_b32 s{sG}, s21, 21")
    a(f"s_lshl_b32 s{sG512}, s{sG}, 9")
    a(f"v_and_b32 v{vL}, 63, v0")
    a(f"s_sub_u32 s{sWv}, s{sWv}, {NW}")
    a(f"s_mul_i32 s{sT}, s{sG}, {FSTR}")
    a(f"v_mov_b32 v{vDbg}, s{sT}")
    a(f"v_mov_b32 v{vDa}, {OFF_D}")
    a(f"s_lshr_b32 s{sRec}, s21, 7")
    a(f"v_lshl_add_u32 v{vR1}, v{vL}, 4, s{sRec}")
    a(f"v_add_u32 v{vR1}, 4096, v{vR1}")
    a(f"v_add_u32 v{vR3}, 8192, v{vR1}")
    a(f"v_lshrrev_b32 v{vY}, 5, v{vL}")
    a(f"v_lshl_add_u32 v{vRm}, v{vY}, 3, s{sRec}")
    a(f"v_and_b32 v{vX}, 7, v{vL}")
    a(f"v_lshl_add_u32 v{vR2}, v{vX}, 11, v{vRm}")
    for q in range(4):
        a(f"v_mov_b32 v{vPd+q}, -1")
    vE = vSa; vP1 = vWa; vP3 = vRa; vPM = vWm
    a(f"s_lshl_b32 s{sT}, s{sWv}, 6")
    a(f"v_add_u32 v{vE}, s{sT}, v{vL}")
    if W > 1:
        a(f"v_lshlrev_b32 v{vE}, {int(math.log2(W))}, v{vE}")
    a(f"s_add_u32 s{sT}, s{sRec}, 4096")
    a(f"v_lshl_add_u32 v{vP1}, v{vE}, 2, s{sT}")
    a(f"v_add_u32 v{vP3}, 8192, v{vP1}")
    a(f"v_lshrrev_b32 v{vY}, 7, v{vE}")
    a(f"v_lshl_add_u32 v{vPM}, v{vY}, 3, s{sRec}")
    a(f"v_lshl_add_u32 v{vPM}, v{vX}, 11, v{vPM}")
    a(f"v_lshlrev_b32 v{vOut}, 8, v{vY}")
    a(f"v_bfe_u32 v{vX}, v{vE}, 2, 4")
    a(f"v_lshl_add_u32 v{vOut}, v{vX}, 4, v{vOut}")
    a(f"v_bfe_u32 v{vX}, v{vE}, 6, 1")
    a(f"v_lshl_add_u32 v{vOut}, v{vX}, 3, v{vOut}")
    a(f"v_and_b32 v{vX}, 3, v{vE}")
    a(f"v_lshl_add_u32 v{vOut}, v{vX}, 1, v{vOut}")
    a(f"v_add_u32 v{vOut}, s{sG512}, v{vOut}")
    a(f"s_getreg_b32 s{sXc}, hwreg(HW_REG_XCC_ID, 0, 4)")
    a(f"s_or_b32 s{sXc}, s{sXc}, 0x100")
    a(f"v_mov_b32 v{vM+1}, s{sXc}")
    a(f"s_mov_b32 s{sGc}, 0x100000")
    a(f"s_mov_b32 s{sDone}, 0")
    a("s_waitcnt lgkmcnt(0)")
    a(f"s_add_u32 s12, s38, {AREA_B}")
    a("s_addc_u32 s13, s39, 0")
    a(f"s_cmp_lg_u32 s{sWv}, 0")
    a("s_barrier")
    if NP > 1:
        a("s_cbranch_scc1 L_hwait")
    a(f"global_store_dwordx2 v{vR2}, v[{vPd}:{vPd+1}], s[38:39] offset:1024 {CF}")
    for s in range(8):
        a(f"global_store_dwordx4 v{vR1 if s<4 else vR3}, {v4(vPd)}, s[38:39] offset:{(s%4)*2048-4096} {CF}")
    a("s_waitcnt vmcnt(0)")
    a(f"global_store_dword v{vDbg}, v{vM+1}, s[36:37] sc1")
    a(f"ds_write_b32 v{vDa}, v{vM+1} offset:4")
    a("s_waitcnt lgkmcnt(0)")
    a.label("L_hwait")
    pO = base; pML = base + 32; vAcc = base + 36; vMx = base + 40; vG = base + 41; vT2 = base + 42
    a("s_barrier")
    a.label("L_poll")
    a(f"global_load_dwordx2 v[{pML}:{pML+1}], v{vPM}, s[38:39] offset:1024 sc1")
    for s in range(8):
        b = pO + 4 * s
        dst = {4: f"dwordx4 v[{b}:{b+3}]", 2: f"dwordx2 v[{b}:{b+1}]", 1: f"dword v{b}"}[W]
        a(f"global_load_{dst}, v{vP1 if s<4 else vP3}, s[38:39] offset:{(s%4)*2048-4096} sc1")
    pos = [0]; wr = {}; tr = {}
    def emit(txt, w=None, rd=(), dpp=False, trans=False):
        need = 0
        for x in rd:
            if dpp and x in wr:
                need = max(need, 2 - (pos[0] - wr[x] - 1))
            if not trans and x in tr:
                need = max(need, 1 - (pos[0] - tr[x] - 1))
        if need > 0:
            a(f"s_nop {need-1}"); pos[0] += need
        a(txt)
        if w is not None:
            wr[w] = pos[0]
            if trans: tr[w] = pos[0]
            else: tr.pop(w, None)
        pos[0] += 1
    def wait(n): emit(f"s_waitcnt vmcnt({n})")
    def dppop(op, d, ctl): emit(f"{op} v{d}, v{d}, v{d} {ctl} {DPPM}", d, (d,), dpp=True)
    pend = []
    def chk(s):
        b = pO + 4 * s
        pend.extend(range(b, b + W))
        while len(pend) >= 2:
            x, y = pend.pop(0), pend.pop(0)
            emit(f"v_max3_u32 v{vMx}, v{vMx}, v{x}, v{y}", vMx, (vMx,))
    def acc(s):
        b = pO + 4 * s
        for q in range(W):
            op = "v_mul_f32_dpp" if s == 0 else "v_fmac_f32_dpp"
            emit(f"{op} v{vAcc+q}, v{vG}, v{b+q} row_newbcast:{s} {DPPM}", vAcc + q, (vG, vAcc + q), dpp=True)
    wait(8)
    emit(f"v_max_f32_dpp v{vG}, v{pML}, v{pML} quad_perm:[1,0,3,2] {DPPM}", vG)
    emit(f"v_max_u32 v{vMx}, v{pML}, v{pML+1}", vMx)
    if CHK1:
        emit(f"v_cmp_eq_u32 vcc, -1, v{vMx}")
        dppop("v_max_f32_dpp", vG, "quad_perm:[2,3,0,1]")
        emit("s_cbranch_vccnz L_again")
        wait(7)
    else:
        wait(7)
        dppop("v_max_f32_dpp", vG, "quad_perm:[2,3,0,1]")
    chk(0)
    dppop("v_max_f32_dpp", vG, "row_half_mirror")
    emit(f"v_sub_f32 v{vG}, v{pML}, v{vG}", vG, (vG,))
    emit(f"v_exp_f32 v{vG}, v{vG}", vG, (vG,), trans=True)
    wait(6)
    emit(f"v_mul_f32 v{vT2}, v{vG}, v{pML+1}", vT2, (vG,))
    chk(1)
    acc(0)
    dppop("v_add_f32_dpp", vT2, "quad_perm:[1,0,3,2]")
    acc(1)
    wait(5)
    dppop("v_add_f32_dpp", vT2, "quad_perm:[2,3,0,1]")
    acc(2); chk(2)
    wait(4)
    dppop("v_add_f32_dpp", vT2, "row_half_mirror")
    acc(3)
    emit(f"v_rcp_f32 v{vT2}, v{vT2}", vT2, (vT2,), trans=True)
    chk(3)
    for s in range(4, 8):
        wait(7 - s)
        acc(s); chk(s)
    assert not pend
    emit(f"v_cmp_eq_u32 vcc, -1, v{vMx}")
    for q in range(W):
        emit(f"v_mul_f32 v{vAcc+q}, v{vT2}, v{vAcc+q}", vAcc + q, (vT2,))
    if W == 4:
        a(f"v_cvt_pk_bf16_f32 v{vAcc}, v{vAcc}, v{vAcc+1}")
        a(f"v_cvt_pk_bf16_f32 v{vAcc+1}, v{vAcc+2}, v{vAcc+3}")
    else:
        a(f"v_cvt_pk_bf16_f32 v{vAcc}, v{vAcc}, v{vAcc+W-1}")
    a("s_cbranch_vccnz L_again")
    st = {4: f"dwordx2 v{vOut}, v[{vAcc}:{vAcc+1}]", 2: f"dword v{vOut}, v{vAcc}", 1: f"short v{vOut}, v{vAcc}"}[W]
    a(f"global_store_{st}, s[34:35]")
    if stamps:
        stamp(0)
        a("s_waitcnt vmcnt(0)")
        stamp(1)
        a(f"s_sub_u32 s44, 0x100000, s{sGc}")
        a("s_mov_b32 s45, 0")
        stamp_out(8, [0, 1, 2])
    a("s_endpgm")
    a.label("L_again")
    if PSLP:
        a(f"s_sleep {PSLP}")
    a(f"s_sub_u32 s{sGc}, s{sGc}, 1")
    a("s_cbranch_scc1 L_end")
    if PLAIN:
        a(f"s_cmp_gt_u32 s{sGc}, {0x100000-NA}")
        a("s_cbranch_scc1 L_poll")
        if NP > 1:
            a(f"s_cmp_lg_u32 s{sWv}, 0")
            a("s_cbranch_scc1 L_poll")
        a(f"global_load_dword v{vCnt}, v{vDbg}, s[36:37] offset:128 sc1")
        a("s_waitcnt vmcnt(0)")
        a(f"v_readfirstlane_b32 s{sT}, v{vCnt}")
        a(f"s_andn2_b32 s{sT}, s{sT}, s{sDone}")
        a(f"s_and_b32 s{sT}, s{sT}, 0xff")
        a("s_cbranch_scc0 L_poll")
        a(f"s_or_b32 s{sDone}, s{sDone}, s{sT}")
        a.label("L_imp")
        a(f"s_ff1_i32_b32 s{sT2}, s{sT}")
        a(f"s_bitset0_b32 s{sT}, s{sT2}")
        a(f"s_lshl_b32 s{sT2}, s{sT2}, 11")
        a(f"v_add_u32 v{vX}, s{sT2}, v{vR1}")
        a(f"v_add_u32 v{vY}, s{sT2}, v{vRm}")
        a(f"global_load_dwordx4 {v4(vPd)}, v{vX}, s[12:13] offset:-4096 sc1")
        a(f"global_load_dwordx2 v[{vM}:{vM+1}], v{vY}, s[12:13] offset:1024 sc1")
        a("s_waitcnt vmcnt(0)")
        a(f"global_store_dwordx4 v{vX}, {v4(vPd)}, s[38:39] offset:-4096")
        a(f"global_store_dwordx2 v{vY}, v[{vM}:{vM+1}], s[38:39] offset:1024")
        a("s_waitcnt vmcnt(0)")
        a(f"s_cmp_lg_u32 s{sT}, 0")
        a("s_cbranch_scc1 L_imp")
    a("s_branch L_poll")
    a.label("L_end")
    a("s_endpgm")
    out = a.text()
    if spin is not None:
        out += spin_kernel(spin)
    out += desc(main, total_decl, 96 if SQ else 72, accum)
    if spin is not None:
        out += desc("spin_kernel", 64, 32, 64)
    return out

if __name__ == "__main__":
    p = argparse.ArgumentParser()
    p.add_argument("--nw", type=int, default=4)
    p.add_argument("--r", type=int, default=2)
    p.add_argument("--trig", type=int, default=2)
    p.add_argument("--coarse", action="store_true")
    p.add_argument("--eff", type=int, default=0)
    p.add_argument("--qpos", type=int, default=1)
    p.add_argument("--nopre", action="store_true")
    p.add_argument("--lean", action="store_true")
    p.add_argument("--hs", type=int, default=0)
    p.add_argument("--sflag", action="store_true")
    p.add_argument("--late", type=int, default=0)
    p.add_argument("--sq", type=int, default=0)
    p.add_argument("--abl", default="")
    p.add_argument("--pslp", type=int, default=0)
    p.add_argument("--fstr", type=int, default=4)
    p.add_argument("--cf", default="")
    p.add_argument("--hg", type=int, default=0)
    p.add_argument("--f1", type=int, default=8)
    p.add_argument("--f2", type=int, default=4)
    p.add_argument("--rb", type=int, default=0)
    p.add_argument("--np", type=int, default=1)
    p.add_argument("--na", type=int, default=6)
    p.add_argument("--chk1", action="store_true")
    p.add_argument("--flag", default="nt")
    p.add_argument("--xmap", default="xcd")
    p.add_argument("--stamps", action="store_true")
    p.add_argument("--spin", default=None)
    p.add_argument("-o", default="-")
    x = p.parse_args()
    s = gen(x.nw, x.r, x.flag, x.xmap, x.stamps, None if x.spin is None else tuple(int(t) for t in x.spin.split(",")),
            x.trig, not x.coarse, x.eff, x.qpos, not x.nopre, x.hs, x.lean, x.sflag, x.late, x.sq, x.abl, x.pslp, x.fstr, x.cf, x.hg, x.f1, x.f2, x.na, x.rb, x.np, x.chk1)
    open(x.o, "w").write(s) if x.o != "-" else sys.stdout.write(s)
```

```python
import sys, math, struct

NAME = "standalone__gqa_softmax__decode_kernel"
SCALE = struct.unpack("<I", struct.pack("<f", math.log2(math.e) / math.sqrt(128.0)))[0]

NW, R, NT = 4, 2, 16
TRIG, F1, F2, NA = 2, 8, 4, 12
OFF_O = 65536
OFF_M = OFF_O + NW * 1024
OFF_L = OFF_M + 32
OFF_D = OFF_L + 32
LDS = 84000
AREA_B = 0x80000

out = []
def a(s, c=None): out.append("    " + s + (("".ljust(max(1, 60 - len(s))) + "; " + c) if c else ""))
def lab(s): out.append(s + ":")
def com(s):
    for l in s.strip("\n").split("\n"): out.append("    ; " + l)

r = 1
def alloc(n, al=1):
    global r
    r = (r + al - 1) // al * al
    b = r; r += n
    return b
vL = alloc(1); vW = alloc(1); vC = alloc(1); vX = alloc(1); vY = alloc(1)
vR1 = alloc(1); vR2 = alloc(1); vR3 = alloc(1); vA0 = alloc(1); vVl = alloc(1); vCnt = alloc(1); vDbg = alloc(1); vI1 = alloc(1)
vSa = alloc(1); vWa = alloc(1); vRa = alloc(1); vWm = alloc(1); vRm = alloc(1); vWs = alloc(1); vRs = alloc(1); vMs = alloc(1)
vDa = alloc(1); vOut = alloc(1); vArr = alloc(1)
vM = alloc(2, 2); vLs = vM + 1
vQ = alloc(4, 4); vMask = alloc(4, 4); vPd = alloc(16, 4); vO = alloc(4, 4); vLa = alloc(4, 4); vOne = alloc(4, 4)
vS = alloc(4, 4); vSn = alloc(4, 4); vD = alloc(16, 4); vB = alloc(R * 16, 4); vTmp = alloc(44, 4)
NV = (r + 7) // 8 * 8
sF1, sF2, sG, sSp, sXc, sG512, sWv, sWin = 14, 15, 16, 17, 18, 19, 20, 21
sRec, sTrig, sCnt, sDone, sGc, sT, sT2, sStep = 23, 24, 25, 26, 27, 28, 29, 30
v4 = lambda b: f"v[{b}:{b+3}]"
buf = lambda s, t: v4(vB + (s * 4 + t) * 4)
DPPM = "row_mask:0xf bank_mask:0xf"
MFMA = "v_mfma_f32_16x16x32_bf16"
def ld1(s, t):
    a(f"buffer_load_dwordx4 {buf(s,t)}, v{vA0}, s[8:11], 0 offen offset:{t*1024} nt")
    if t == 3: a(f"v_add_u32 v{vA0}, s{sStep}, v{vA0}")

out.append(f"""; Kernarg layout for this problem (48 bytes, ptrs only, base s[0:1]):
; @launch grid=(256,1,1) block=({(NW+1)*64},1,1) lds={LDS}
;
.amdgcn_target "amdgcn-amd-amdhsa--gfx950"
.text
.globl {NAME}
.p2align 8
.type {NAME},@function""")
lab(NAME)
a("s_load_dwordx2 s[8:9], s[0:1], 8", "k -> SRD base")
a("s_load_dwordx2 s[4:5], s[0:1], 0", "q")
a(f"v_readfirstlane_b32 s{sWv}, v0")
a(f"s_lshr_b32 s{sT}, s2, 3")
a(f"s_and_b32 s{sWin}, s2, 7")
a(f"s_lshl_b32 s{sWin}, s{sWin}, 5")
a(f"s_or_b32 s{sWin}, s{sWin}, s{sT}", "window = G*8+split, G = (wg&7)*4+(wg>>6), split = (wg>>3)&7")
a(f"s_cmp_ge_u32 s{sT}, 32")
a("s_cbranch_scc1 L_end", "extra workgroups leave")
a(f"s_lshl_b32 s{sWin}, s{sWin}, 18", "byte offset of the window in k and in v")
a(f"v_and_b32 v{vA0}, 0x1cc, v0")
a(f"v_and_b32 v{vX}, 48, v0")
a(f"v_and_b32 v{vY}, 3, v0")
a(f"v_lshlrev_b32 v{vY}, 4, v{vY}")
a(f"v_lshl_or_b32 v{vX}, v{vX}, 2, v{vY}", "(l>>4)*64 + (l&3)*16")
a(f"v_lshl_or_b32 v{vA0}, v{vA0}, 6, v{vX}", "+ ((l>>2)&3)*256 + wave*4096")
a(f"v_add_u32 v{vA0}, s{sWin}, v{vA0}")
a(f"s_add_u32 s10, s{sWin}, 0x40000", "num_records = window end: prefetch past it reads nothing")
a("s_mov_b32 s11, 0x20000")
a(f"s_bitcmp1_b32 s{sWv}, 8")
a("s_cbranch_scc1 L_helper")
a("s_waitcnt lgkmcnt(0)")
for t in range(4):
    a(f"buffer_load_dwordx4 {buf(0,t)}, v{vA0}, s[8:11], 0 offen offset:{t*1024} nt")
a(f"s_movk_i32 s{sStep}, {NW*4096}")
a(f"s_lshr_b32 s{sG512}, s{sWin}, 12")
a(f"s_andn2_b32 s{sG512}, s{sG512}, 0x1ff", "G*512")
a(f"v_add_u32 v{vA0}, s{sStep}, v{vA0}")
a(f"v_bfe_u32 v{vY}, v0, 3, 1", "head of this lane's score column")
a(f"v_lshl_add_u32 v{vX}, v{vY}, 8, v{vX}")
a(f"v_add_u32 v{vX}, s{sG512}, v{vX}")
a(f"global_load_dwordx4 {v4(vQ)}, v{vX}, s[4:5]", "q fragment")
for t in range(4): ld1(1, t)
com("---- setup, hidden behind the first loads")
a("s_load_dwordx8 s[32:39], s[0:1], 16", "v, out, debug, ws")
a(f"s_lshr_b32 s{sWv}, s{sWv}, 6")
a(f"s_lshr_b32 s{sG}, s{sWin}, 21")
a(f"s_bfe_u32 s{sSp}, s{sWin}, 0x30012")
a(f"v_lshrrev_b32 v{vW}, 6, v0")
a(f"v_and_b32 v{vL}, 63, v0")
a(f"v_lshlrev_b32 v{vRs}, 4, v{vY}")
a(f"v_add_u32 v{vRs}, {OFF_M}, v{vRs}", "LDS max slots, score layout (h = (l>>3)&1)")
a(f"v_lshl_add_u32 v{vWs}, v{vW}, 2, v{vRs}")
a(f"v_lshlrev_b32 v{vVl}, 4, v{vL}")
a(f"v_lshl_add_u32 v{vSa}, v{vW}, 14, v{vVl}", "LDS score slots of this wave")
a(f"v_add_u32 v{vRa}, {OFF_O}, v{vVl}")
a(f"v_lshl_add_u32 v{vWa}, v{vW}, 10, v{vRa}", "LDS O slot of this wave")
a(f"s_lshr_b32 s{sRec}, s{sWin}, 7", "record offset = window*2048")
a(f"v_add_u32 v{vR1}, s{sRec}, v{vVl}")
a(f"v_lshl_add_u32 v{vVl}, v{vW}, 12, v{vVl}")
a(f"v_add_u32 v{vVl}, s{sWin}, v{vVl}", "first V tile of this wave")
a(f"v_lshrrev_b32 v{vY}, 5, v{vL}", "head in the O layout")
a(f"v_lshl_add_u32 v{vR2}, v{vY}, 3, s{sRec}")
a(f"v_lshlrev_b32 v{vRm}, 4, v{vY}")
a(f"v_add_u32 v{vRm}, {OFF_M}, v{vRm}")
a(f"v_lshl_add_u32 v{vWm}, v{vW}, 2, v{vRm}")
a(f"s_lshl_b32 s{sT}, s{sG}, 2")
a(f"v_mov_b32 v{vDbg}, s{sT}")
a(f"v_mov_b32 v{vI1}, 1")
a(f"v_mov_b32 v{vDa}, {OFF_D}")
a(f"s_getreg_b32 s{sXc}, hwreg(HW_REG_XCC_ID, 0, 4)")
a(f"s_or_b32 s{sXc}, s{sXc}, 0x100", "flag value of a consumer on this XCD")
a(f"s_cmp_eq_u32 s{sSp}, 0")
a(f"s_cselect_b32 s{sTrig}, {TRIG}, -1", "split 0 wakes its poller near the end")
a(f"v_mov_b32 v{vM}, 0")
a(f"v_mov_b32 v{vM+1}, 0")
a(f"ds_write_b64 v{vDa}, v[{vM}:{vM+1}]", "arrive counter = 0, flag = 0")
a(f"s_cselect_b32 s{sT}, 1, s{sWv}")
a(f"s_cmp_eq_u32 s{sT}, 0", "wave 0 of the other splits fetches the flag")
a(f"s_cselect_b32 s{sF1}, {F1}, -1")
a(f"s_cselect_b32 s{sF2}, {F2}, -1")
a(f"v_mov_b32 v{vC}, 0x{SCALE:08x}", "log2(e)/sqrt(128)")
a(f"v_and_b32 v{vX}, 1, v{vL}")
a(f"v_lshlrev_b32 v{vX}, 4, v{vX}")
a(f"v_mov_b32 v{vY}, 0xffff")
a(f"v_lshlrev_b32 v{vX}, v{vX}, v{vY}")
a(f"v_bfe_u32 v{vY}, v{vL}, 1, 2")
for q in range(4):
    a(f"v_cmp_eq_u32 vcc, {q}, v{vY}")
    a("s_nop 1")
    a(f"v_cndmask_b32 v{vMask+q}, 0, v{vX}, vcc", "diagonal masks: element l&7 of the 8 bf16" if q == 0 else None)
for q in range(4):
    a(f"v_mov_b32 v{vO+q}, 0")
    a(f"v_mov_b32 v{vLa+q}, 0")
    a(f"v_mov_b32 v{vOne+q}, 0x3f803f80")
a(f"v_mov_b32 v{vMs}, 0xff7fffff")
a(f"s_mov_b32 s{sCnt}, 0")
a("s_waitcnt vmcnt(4) lgkmcnt(0)", "first tile, q and the remaining pointers")
com("---- K phase")
lab("L_k")
for s in range(R):
    if s == 0:
        a(f"s_cmp_lg_u32 s{sCnt}, {NT-R}")
        a("s_cbranch_scc1 L_ksw")
        a("s_mov_b64 s[8:9], s[32:33]", "K exhausted: the refills continue with V")
        a(f"v_mov_b32 v{vA0}, v{vVl}")
        lab("L_ksw")
    for t in range(4):
        a("s_waitcnt vmcnt(7)")
        a(f"{MFMA} {v4(vD+4*t)}, {buf(s,t)}, {v4(vQ)}, 0")
        ld1(s, t)
    a("s_nop 2")
    for q in range(4):
        for t in range(4):
            a(f"{'v_mul_f32_dpp' if q == 0 else 'v_fmac_f32_dpp'} v{vS+t}, v{vD+4*t+q}, v{vC} quad_perm:[{q},{q},{q},{q}] {DPPM}")
    a(f"v_max3_f32 v{vMs}, v{vMs}, v{vS}, v{vS+1}")
    a(f"ds_write_b128 v{vSa}, {v4(vS)}")
    a(f"v_max3_f32 v{vMs}, v{vMs}, v{vS+2}, v{vS+3}")
    a(f"v_add_u32 v{vSa}, 1024, v{vSa}")
    a(f"s_add_u32 s{sCnt}, s{sCnt}, 1")
a(f"s_cmp_lg_u32 s{sCnt}, {NT}")
a("s_cbranch_scc1 L_k")
com("---- maximum of the split")
a(f"v_subrev_u32 v{vSa}, {NT*1024}, v{vSa}")
for sw in ("v_permlane16_swap_b32", "v_permlane32_swap_b32"):
    a(f"v_mov_b32 v{vX}, v{vMs}")
    a("s_nop 1")
    a(f"{sw} v{vMs}, v{vX}")
    a("s_nop 0")
    a(f"v_max_f32 v{vMs}, v{vMs}, v{vX}")
a(f"ds_write_b32 v{vWs}, v{vMs}")
a("s_waitcnt lgkmcnt(0)")
a("s_barrier")
a(f"ds_read_b128 {v4(vD)}, v{vRs}")
a(f"ds_read_b128 {v4(vD+8)}, v{vRm}")
a(f"ds_read_b128 {v4(vSn)}, v{vSa}")
a("s_waitcnt lgkmcnt(1)")
for dst, b in ((vMs, vD), (vM, vD + 8)):
    a(f"v_max3_f32 v{dst}, v{b}, v{b+1}, v{b+2}")
    a(f"v_max_f32 v{dst}, v{dst}, v{b+3}")
a(f"v_min_u32 v{vM}, -2, v{vM}", "published words never equal the sentinel")
a(f"s_mov_b32 s{sCnt}, {NT}")
com("---- V phase")
lab("L_v")
for s in range(R):
    if s == 0:
        a(f"s_cmp_lg_u32 s{sCnt}, s{sTrig}")
        a("s_cbranch_scc1 L_notrig")
        a("s_barrier")
        lab("L_notrig")
        a(f"s_cmp_lg_u32 s{sCnt}, s{sF1}")
        a("s_cbranch_scc1 L_nf1")
        a(f"global_load_dword v{vCnt}, v{vDbg}, s[36:37] sc1")
        lab("L_nf1")
        a(f"s_cmp_lg_u32 s{sCnt}, s{sF2}")
        a("s_cbranch_scc1 L_nf2")
        a(f"ds_write_b32 v{vDa}, v{vCnt} offset:4", "that load is older than tiles consumed since")
        lab("L_nf2")
    a("s_waitcnt lgkmcnt(0)")
    for t in range(4): a(f"v_sub_f32 v{vS+t}, v{vSn+t}, v{vMs}")
    a(f"ds_read_b128 {v4(vSn)}, v{vSa} offset:1024")
    a(f"v_add_u32 v{vSa}, 1024, v{vSa}")
    for t in range(4): a(f"v_exp_f32 v{vS+t}, v{vS+t}")
    a(f"s_sub_u32 s{sCnt}, s{sCnt}, 1")
    for t in range(4): a(f"v_cvt_pk_bf16_f32 v{vS+t}, v{vS+t}, v{vS+t}")
    for t in range(4):
        for q in range(4): a(f"v_and_b32 v{vPd+4*t+q}, v{vS+t}, v{vMask+q}")
    for t in range(4): a(f"{MFMA} {v4(vLa)}, {v4(vPd+4*t)}, {v4(vOne)}, {v4(vLa)}")
    if s == R - 1: a(f"s_cmp_eq_u32 s{sCnt}, 0")
    for t in range(4):
        a("s_waitcnt vmcnt(7)")
        a(f"{MFMA} {v4(vO)}, {v4(vPd+4*t)}, {buf(s,t)}, {v4(vO)}")
        if s == R - 1 and t == 3: a("s_cbranch_scc1 L_vx")
        ld1(s, t)
a("s_branch L_v")
lab("L_vx")
com("---- the last wave to arrive adds the four partials (LDS executes a wave's operations in order)")
lb = vTmp; ob = vTmp + 4
a(f"ds_write_b32 v{vWm}, v{vLa} offset:{OFF_L-OFF_M}")
a("s_nop 5")
a(f"ds_write_b128 v{vWa}, {v4(vO)}")
a("s_mov_b64 exec, 1")
a(f"ds_add_rtn_u32 v{vArr}, v{vDa}, v{vI1}")
a("s_mov_b64 exec, -1")
for w in range(NW): a(f"ds_read_b128 {v4(ob+4*w)}, v{vRa} offset:{1024*w}")
a(f"ds_read_b128 {v4(lb)}, v{vRm} offset:{OFF_L-OFF_M}")
a(f"ds_read_b32 v{vCnt}, v{vDa} offset:4")
a("s_waitcnt lgkmcnt(6)")
a(f"v_readfirstlane_b32 s{sT}, v{vArr}")
a(f"s_cmp_lg_u32 s{sT}, {NW-1}")
a("s_cbranch_scc1 L_end")
for w in range(1, NW):
    a(f"s_waitcnt lgkmcnt({NW+1-w})")
    src = ob if w == 1 else vO
    a(f"v_pk_add_f32 v[{vO}:{vO+1}], v[{src}:{src+1}], v[{ob+4*w}:{ob+4*w+1}]")
    a(f"v_pk_add_f32 v[{vO+2}:{vO+3}], v[{src+2}:{src+3}], v[{ob+4*w+2}:{ob+4*w+3}]")
a("s_waitcnt lgkmcnt(0)")
a(f"v_cmp_ne_u32 vcc, s{sXc}, v{vCnt}")
for q in range(4): a(f"v_min_u32 v{vO+q}, -2, v{vO+q}")
a(f"v_add_f32 v{vLs}, v{lb}, v{lb+1}")
a(f"v_add_f32 v{vLs}, v{vLs}, v{lb+2}")
a(f"v_add_f32 v{vLs}, v{vLs}, v{lb+3}")
a(f"v_min_u32 v{vLs}, -2, v{vLs}")
a("s_cbranch_vccnz L_far")
a(f"global_store_dwordx4 v{vR1}, {v4(vO)}, s[38:39]", "records cleared, consumer shares this L2")
a(f"global_store_dwordx2 v{vR2}, v[{vM}:{vM+1}], s[38:39] offset:1024")
a("s_endpgm")
lab("L_far")
a(f"v_add_u32 v{vR1}, {AREA_B}, v{vR1}")
a(f"v_add_u32 v{vR2}, {AREA_B}, v{vR2}")
a(f"global_store_dwordx4 v{vR1}, {v4(vO)}, s[38:39] sc1")
a(f"global_store_dwordx2 v{vR2}, v[{vM}:{vM+1}], s[38:39] offset:1024 sc1")
a(f"s_lshl_b32 s{sT}, 1, s{sSp}")
a(f"v_mov_b32 v{vY}, s{sT}")
a("s_waitcnt vmcnt(0)")
a("s_mov_b64 exec, 1")
a(f"global_atomic_or v{vDbg}, v{vY}, s[36:37] offset:128 sc1")
a("s_endpgm")
com("==== wave 4: consumer of the group (split 0 only)")
lab("L_helper")
a(f"s_bfe_u32 s{sSp}, s{sWin}, 0x30012")
a("s_cbranch_scc1 L_end")
a("s_load_dwordx8 s[32:39], s[0:1], 16")
a(f"s_lshr_b32 s{sG}, s{sWin}, 21")
a(f"s_lshl_b32 s{sG512}, s{sG}, 9")
a(f"v_and_b32 v{vL}, 63, v0")
a(f"s_lshl_b32 s{sT}, s{sG}, 2")
a(f"v_mov_b32 v{vDbg}, s{sT}")
a(f"v_mov_b32 v{vDa}, {OFF_D}")
a(f"s_lshr_b32 s{sRec}, s{sWin}, 7")
a(f"v_lshl_add_u32 v{vR1}, v{vL}, 4, s{sRec}")
a(f"v_add_u32 v{vR1}, 4096, v{vR1}", "records 0-3")
a(f"v_add_u32 v{vR3}, 8192, v{vR1}", "records 4-7")
a(f"v_lshrrev_b32 v{vY}, 5, v{vL}")
a(f"v_lshl_add_u32 v{vRm}, v{vY}, 3, s{sRec}")
a(f"v_and_b32 v{vX}, 7, v{vL}")
a(f"v_lshl_add_u32 v{vR2}, v{vX}, 11, v{vRm}", "(max, sum) of record l&7, head l>>5")
for q in range(4): a(f"v_mov_b32 v{vPd+q}, -1")
a(f"v_lshlrev_b32 v{vOut}, 8, v{vY}", "out = G*512 + h*256 + (l&15)*16 + ((l>>4)&1)*8")
a(f"v_and_b32 v{vX}, 15, v{vL}")
a(f"v_lshl_add_u32 v{vOut}, v{vX}, 4, v{vOut}")
a(f"v_bfe_u32 v{vX}, v{vL}, 4, 1")
a(f"v_lshl_add_u32 v{vOut}, v{vX}, 3, v{vOut}")
a(f"v_add_u32 v{vOut}, s{sG512}, v{vOut}")
a(f"s_getreg_b32 s{sXc}, hwreg(HW_REG_XCC_ID, 0, 4)")
a(f"s_or_b32 s{sXc}, s{sXc}, 0x100")
a(f"v_mov_b32 v{vM+1}, s{sXc}")
a(f"s_mov_b32 s{sGc}, 0x100000", "bound on the number of polling rounds")
a(f"s_mov_b32 s{sDone}, 0")
a("s_waitcnt lgkmcnt(0)")
a(f"s_add_u32 s12, s38, {AREA_B}")
a("s_addc_u32 s13, s39, 0")
a("s_barrier", "K -> V transition of this workgroup")
rec = lambda s: (vR1 if s < 4 else vR3, (s % 4) * 2048 - 4096)
a(f"global_store_dwordx2 v{vR2}, v[{vPd}:{vPd+1}], s[38:39] offset:1024")
for s in range(8): a(f"global_store_dwordx4 v{rec(s)[0]}, {v4(vPd)}, s[38:39] offset:{rec(s)[1]}")
a("s_waitcnt vmcnt(0)")
a(f"global_store_dword v{vDbg}, v{vM+1}, s[36:37] sc1", "records are empty: raise the flag")
a(f"ds_write_b32 v{vDa}, v{vM+1} offset:4")
a("s_waitcnt lgkmcnt(0)")
a("s_barrier", "woken two tiles before this workgroup ends")
pO = vTmp; pML = vTmp + 32; vAcc = vTmp + 36; vMx = vTmp + 40; vG = vTmp + 41; vT2 = vTmp + 42
lab("L_poll")
a(f"global_load_dwordx2 v[{pML}:{pML+1}], v{vR2}, s[38:39] offset:1024 sc1")
for s in range(8): a(f"global_load_dwordx4 {v4(pO+4*s)}, v{rec(s)[0]}, s[38:39] offset:{rec(s)[1]} sc1")
pos = [0]; wr = {}; tr = {}
def emit(txt, w=None, rd=(), dpp=False, trans=False):
    need = 0
    for x in rd:
        if dpp and x in wr: need = max(need, 2 - (pos[0] - wr[x] - 1))
        if not trans and x in tr: need = max(need, 1 - (pos[0] - tr[x] - 1))
    if need > 0:
        a(f"s_nop {need-1}"); pos[0] += need
    a(txt)
    if w is not None:
        wr[w] = pos[0]
        if trans: tr[w] = pos[0]
        else: tr.pop(w, None)
    pos[0] += 1
wait = lambda n: emit(f"s_waitcnt vmcnt({n})")
dppop = lambda op, d, ctl: emit(f"{op} v{d}, v{d}, v{d} {ctl} {DPPM}", d, (d,), dpp=True)
def chk(s):
    b = pO + 4 * s
    emit(f"v_max3_u32 v{vMx}, v{vMx}, v{b}, v{b+1}", vMx)
    emit(f"v_max3_u32 v{vMx}, v{vMx}, v{b+2}, v{b+3}", vMx)
def acc(s):
    for q in range(4):
        emit(f"{'v_mul_f32_dpp' if s == 0 else 'v_fmac_f32_dpp'} v{vAcc+q}, v{vG}, v{pO+4*s+q} row_newbcast:{s} {DPPM}", vAcc + q, (vG, vAcc + q), dpp=True)
wait(8)
emit(f"v_max_f32_dpp v{vG}, v{pML}, v{pML} quad_perm:[1,0,3,2] {DPPM}", vG)
emit(f"v_max_u32 v{vMx}, v{pML}, v{pML+1}", vMx)
wait(7)
dppop("v_max_f32_dpp", vG, "quad_perm:[2,3,0,1]")
chk(0)
dppop("v_max_f32_dpp", vG, "row_half_mirror")
emit(f"v_sub_f32 v{vG}, v{pML}, v{vG}", vG)
emit(f"v_exp_f32 v{vG}, v{vG}", vG, trans=True)
wait(6)
emit(f"v_mul_f32 v{vT2}, v{vG}, v{pML+1}", vT2, (vG,))
chk(1); acc(0)
dppop("v_add_f32_dpp", vT2, "quad_perm:[1,0,3,2]")
acc(1); wait(5)
dppop("v_add_f32_dpp", vT2, "quad_perm:[2,3,0,1]")
acc(2); chk(2); wait(4)
dppop("v_add_f32_dpp", vT2, "row_half_mirror")
acc(3)
emit(f"v_rcp_f32 v{vT2}, v{vT2}", vT2, trans=True)
chk(3)
for s in range(4, 8):
    wait(7 - s); acc(s); chk(s)
emit(f"v_cmp_eq_u32 vcc, -1, v{vMx}")
for q in range(4): emit(f"v_mul_f32 v{vAcc+q}, v{vT2}, v{vAcc+q}", vAcc + q, (vT2,))
a(f"v_cvt_pk_bf16_f32 v{vAcc}, v{vAcc}, v{vAcc+1}")
a(f"v_cvt_pk_bf16_f32 v{vAcc+1}, v{vAcc+2}, v{vAcc+3}")
a("s_cbranch_vccnz L_again", "some word still holds the sentinel")
a(f"global_store_dwordx2 v{vOut}, v[{vAcc}:{vAcc+1}], s[34:35]")
a("s_endpgm")
lab("L_again")
a(f"s_sub_u32 s{sGc}, s{sGc}, 1")
a("s_cbranch_scc1 L_end")
a(f"s_cmp_gt_u32 s{sGc}, {0x100000-NA}")
a("s_cbranch_scc1 L_poll")
com("import the records that were announced as write-through copies")
a(f"global_load_dword v{vCnt}, v{vDbg}, s[36:37] offset:128 sc1")
a("s_waitcnt vmcnt(0)")
a(f"v_readfirstlane_b32 s{sT}, v{vCnt}")
a(f"s_andn2_b32 s{sT}, s{sT}, s{sDone}")
a(f"s_and_b32 s{sT}, s{sT}, 0xff")
a("s_cbranch_scc0 L_poll")
a(f"s_or_b32 s{sDone}, s{sDone}, s{sT}")
lab("L_imp")
a(f"s_ff1_i32_b32 s{sT2}, s{sT}")
a(f"s_bitset0_b32 s{sT}, s{sT2}")
a(f"s_lshl_b32 s{sT2}, s{sT2}, 11")
a(f"v_add_u32 v{vX}, s{sT2}, v{vR1}")
a(f"v_add_u32 v{vY}, s{sT2}, v{vRm}")
a(f"global_load_dwordx4 {v4(vPd)}, v{vX}, s[12:13] offset:-4096 sc1")
a(f"global_load_dwordx2 v[{vM}:{vM+1}], v{vY}, s[12:13] offset:1024 sc1")
a("s_waitcnt vmcnt(0)")
a(f"global_store_dwordx4 v{vX}, {v4(vPd)}, s[38:39] offset:-4096")
a(f"global_store_dwordx2 v{vY}, v[{vM}:{vM+1}], s[38:39] offset:1024")
a("s_waitcnt vmcnt(0)")
a(f"s_cmp_lg_u32 s{sT}, 0")
a("s_cbranch_scc1 L_imp")
a("s_branch L_poll")
lab("L_end")
a("s_endpgm")
out.append(f""".section .rodata,"a"
.p2align 6
.amdhsa_kernel {NAME}
  .amdhsa_next_free_vgpr {NV}
  .amdhsa_next_free_sgpr 48
  .amdhsa_accum_offset {NV}
  .amdhsa_group_segment_fixed_size 0
  .amdhsa_kernarg_size 48
  .amdhsa_user_sgpr_count 2
  .amdhsa_user_sgpr_kernarg_segment_ptr 1
  .amdhsa_system_sgpr_workgroup_id_x 1
.end_amdhsa_kernel""")
open(sys.argv[1], "w").write("\n".join(out) + "\n")
```

```python
import sys, math, struct

NAME = "standalone__gqa_softmax__decode_kernel"
SCALE = struct.unpack("<I", struct.pack("<f", math.log2(math.e) / math.sqrt(128.0)))[0]

NW, R, NT = 4, 2, 16
TRIG, F1, F2, NA = 2, 8, 4, 12
OFF_O = 65536
OFF_M = OFF_O + NW * 1024
OFF_L = OFF_M + 32
OFF_D = OFF_L + 32
LDS = 84000
AREA_B = 0x80000

out = []
def a(s, c=None): out.append("    " + s + (("".ljust(max(1, 60 - len(s))) + "; " + c) if c else ""))
def lab(s): out.append(s + ":")
def com(s):
    for l in s.strip("\n").split("\n"): out.append("    ; " + l)

r = 1
def alloc(n, al=1):
    global r
    r = (r + al - 1) // al * al
    b = r; r += n
    return b
vL = alloc(1); vW = alloc(1); vC = alloc(1); vX = alloc(1); vY = alloc(1)
vR1 = alloc(1); vR2 = alloc(1); vR3 = alloc(1); vA0 = alloc(1); vVl = alloc(1); vCnt = alloc(1); vDbg = alloc(1); vI1 = alloc(1)
vSa = alloc(1); vWa = alloc(1); vRa = alloc(1); vWm = alloc(1); vRm = alloc(1); vWs = alloc(1); vRs = alloc(1); vMs = alloc(1)
vDa = alloc(1); vOut = alloc(1); vArr = alloc(1)
vM = alloc(2, 2); vLs = vM + 1
vQ = alloc(4, 4); vMask = alloc(4, 4); vPd = alloc(16, 4); vO = alloc(4, 4); vLa = alloc(4, 4); vOne = alloc(4, 4)
vS = alloc(4, 4); vSn = alloc(4, 4); vD = alloc(16, 4); vB = alloc(R * 16, 4); vTmp = alloc(44, 4)
NV = (r + 7) // 8 * 8
sF1, sF2, sG, sSp, sXc, sG512, sWv, sWin = 14, 15, 16, 17, 18, 19, 20, 21
sRec, sTrig, sCnt, sDone, sGc, sT, sT2, sStep = 23, 24, 25, 26, 27, 28, 29, 30
v4 = lambda b: f"v[{b}:{b+3}]"
buf = lambda s, t: v4(vB + (s * 4 + t) * 4)
DPPM = "row_mask:0xf bank_mask:0xf"
MFMA = "v_mfma_f32_16x16x32_bf16"
def ld1(s, t):
    a(f"buffer_load_dwordx4 {buf(s,t)}, v{vA0}, s[8:11], 0 offen offset:{t*1024} nt")
    if t == 3: a(f"v_add_u32 v{vA0}, s{sStep}, v{vA0}")

out.append(f"""; Kernarg layout for this problem (48 bytes, ptrs only, base s[0:1]):
; @launch grid=(256,1,1) block=({(NW+1)*64},1,1) lds={LDS}
;
.amdgcn_target "amdgcn-amd-amdhsa--gfx950"
.text
.globl {NAME}
.p2align 8
.type {NAME},@function""")
lab(NAME)
a("s_load_dwordx2 s[8:9], s[0:1], 8", "k -> SRD base")
a("s_load_dwordx2 s[4:5], s[0:1], 0", "q")
a(f"v_readfirstlane_b32 s{sWv}, v0")
a(f"s_lshr_b32 s{sT}, s2, 3")
a(f"s_and_b32 s{sWin}, s2, 7")
a(f"s_lshl_b32 s{sWin}, s{sWin}, 5")
a(f"s_or_b32 s{sWin}, s{sWin}, s{sT}", "window = G*8+split, G = (wg&7)*4+(wg>>6), split = (wg>>3)&7")
a(f"s_cmp_ge_u32 s{sT}, 32")
a("s_cbranch_scc1 L_end", "extra workgroups leave")
a(f"s_lshl_b32 s{sWin}, s{sWin}, 18", "byte offset of the window in k and in v")
a(f"v_and_b32 v{vA0}, 0x1cc, v0")
a(f"v_and_b32 v{vX}, 48, v0")
a(f"v_and_b32 v{vY}, 3, v0")
a(f"v_lshlrev_b32 v{vY}, 4, v{vY}")
a(f"v_lshl_or_b32 v{vX}, v{vX}, 2, v{vY}", "(l>>4)*64 + (l&3)*16")
a(f"v_lshl_or_b32 v{vA0}, v{vA0}, 6, v{vX}", "+ ((l>>2)&3)*256 + wave*4096")
a(f"v_add_u32 v{vA0}, s{sWin}, v{vA0}")
a(f"s_add_u32 s10, s{sWin}, 0x40000", "num_records = window end: prefetch past it reads nothing")
a("s_mov_b32 s11, 0x20000")
a(f"s_movk_i32 s{sStep}, {NW*4096}")
a(f"s_lshr_b32 s{sG512}, s{sWin}, 12")
a(f"s_andn2_b32 s{sG512}, s{sG512}, 0x1ff", "G*512")
a(f"v_bfe_u32 v{vY}, v0, 3, 1", "head of this lane's score column")
a(f"v_lshl_add_u32 v{vX}, v{vY}, 8, v{vX}")
a(f"v_add_u32 v{vX}, s{sG512}, v{vX}")
a(f"s_bitcmp1_b32 s{sWv}, 8")
a("s_cbranch_scc1 L_helper")
a("s_waitcnt lgkmcnt(0)")
a(f"global_load_dwordx4 {v4(vQ)}, v{vX}, s[4:5]", "q fragment")
for s in range(R):
    for t in range(4): ld1(s, t)
com("---- setup, hidden behind the first loads")
a("s_load_dwordx8 s[32:39], s[0:1], 16", "v, out, debug, ws")
a(f"s_lshr_b32 s{sWv}, s{sWv}, 6")
a(f"s_lshr_b32 s{sG}, s{sWin}, 21")
a(f"s_bfe_u32 s{sSp}, s{sWin}, 0x30012")
a(f"v_lshrrev_b32 v{vW}, 6, v0")
a(f"v_and_b32 v{vL}, 63, v0")
a(f"v_lshlrev_b32 v{vRs}, 4, v{vY}")
a(f"v_add_u32 v{vRs}, {OFF_M}, v{vRs}", "LDS max slots, score layout (h = (l>>3)&1)")
a(f"v_lshl_add_u32 v{vWs}, v{vW}, 2, v{vRs}")
a(f"v_lshlrev_b32 v{vVl}, 4, v{vL}")
a(f"v_lshl_add_u32 v{vSa}, v{vW}, 14, v{vVl}", "LDS score slots of this wave")
a(f"v_add_u32 v{vRa}, {OFF_O}, v{vVl}")
a(f"v_lshl_add_u32 v{vWa}, v{vW}, 10, v{vRa}", "LDS O slot of this wave")
a(f"s_lshr_b32 s{sRec}, s{sWin}, 7", "record offset = window*2048")
a(f"v_add_u32 v{vR1}, s{sRec}, v{vVl}")
a(f"v_lshl_add_u32 v{vVl}, v{vW}, 12, v{vVl}")
a(f"v_add_u32 v{vVl}, s{sWin}, v{vVl}", "first V tile of this wave")
a(f"v_lshrrev_b32 v{vY}, 5, v{vL}", "head in the O layout")
a(f"v_lshl_add_u32 v{vR2}, v{vY}, 3, s{sRec}")
a(f"v_lshlrev_b32 v{vRm}, 4, v{vY}")
a(f"v_add_u32 v{vRm}, {OFF_M}, v{vRm}")
a(f"v_lshl_add_u32 v{vWm}, v{vW}, 2, v{vRm}")
a(f"s_lshl_b32 s{sT}, s{sG}, 2")
a(f"v_mov_b32 v{vDbg}, s{sT}")
a(f"v_mov_b32 v{vI1}, 1")
a(f"v_mov_b32 v{vDa}, {OFF_D}")
a(f"s_getreg_b32 s{sXc}, hwreg(HW_REG_XCC_ID, 0, 4)")
a(f"s_or_b32 s{sXc}, s{sXc}, 0x100", "flag value of a consumer on this XCD")
a(f"s_cmp_eq_u32 s{sSp}, 0")
a(f"s_cselect_b32 s{sTrig}, {TRIG}, -1", "split 0 wakes its poller near the end")
a(f"v_mov_b32 v{vM}, 0")
a(f"v_mov_b32 v{vM+1}, 0")
a(f"ds_write_b64 v{vDa}, v[{vM}:{vM+1}]", "arrive counter = 0, flag = 0")
a(f"s_cselect_b32 s{sT}, 1, s{sWv}")
a(f"s_cmp_eq_u32 s{sT}, 0", "wave 0 of the other splits fetches the flag")
a(f"s_cselect_b32 s{sF1}, {F1}, -1")
a(f"s_cselect_b32 s{sF2}, {F2}, -1")
a(f"v_mov_b32 v{vC}, 0x{SCALE:08x}", "log2(e)/sqrt(128)")
a(f"v_and_b32 v{vX}, 1, v{vL}")
a(f"v_lshlrev_b32 v{vX}, 4, v{vX}")
a(f"v_mov_b32 v{vY}, 0xffff")
a(f"v_lshlrev_b32 v{vX}, v{vX}, v{vY}")
a(f"v_bfe_u32 v{vY}, v{vL}, 1, 2")
for q in range(4):
    a(f"v_cmp_eq_u32 vcc, {q}, v{vY}")
    a("s_nop 1")
    a(f"v_cndmask_b32 v{vMask+q}, 0, v{vX}, vcc", "diagonal masks: element l&7 of the 8 bf16" if q == 0 else None)
for q in range(4):
    a(f"v_mov_b32 v{vO+q}, 0")
    a(f"v_mov_b32 v{vLa+q}, 0")
    a(f"v_mov_b32 v{vOne+q}, 0x3f803f80")
a(f"v_mov_b32 v{vMs}, 0xff7fffff")
a(f"s_mov_b32 s{sCnt}, 0")
a("s_waitcnt lgkmcnt(0)", "remaining pointers (q is older than every K load)")
com("---- K phase")
lab("L_k")
for s in range(R):
    if s == 0:
        a(f"s_cmp_lg_u32 s{sCnt}, {NT-R}")
        a("s_cbranch_scc1 L_ksw")
        a("s_mov_b64 s[8:9], s[32:33]", "K exhausted: the refills continue with V")
        a(f"v_mov_b32 v{vA0}, v{vVl}")
        lab("L_ksw")
    for t in range(4):
        a("s_waitcnt vmcnt(7)")
        a(f"{MFMA} {v4(vD+4*t)}, {buf(s,t)}, {v4(vQ)}, 0")
        ld1(s, t)
    a("s_nop 2")
    for q in range(4):
        for t in range(4):
            a(f"{'v_mul_f32_dpp' if q == 0 else 'v_fmac_f32_dpp'} v{vS+t}, v{vD+4*t+q}, v{vC} quad_perm:[{q},{q},{q},{q}] {DPPM}")
    a(f"v_max3_f32 v{vMs}, v{vMs}, v{vS}, v{vS+1}")
    a(f"ds_write_b128 v{vSa}, {v4(vS)}")
    a(f"v_max3_f32 v{vMs}, v{vMs}, v{vS+2}, v{vS+3}")
    a(f"v_add_u32 v{vSa}, 1024, v{vSa}")
    a(f"s_add_u32 s{sCnt}, s{sCnt}, 1")
a(f"s_cmp_lg_u32 s{sCnt}, {NT}")
a("s_cbranch_scc1 L_k")
com("---- maximum of the split")
a(f"v_subrev_u32 v{vSa}, {NT*1024}, v{vSa}")
for sw in ("v_permlane16_swap_b32", "v_permlane32_swap_b32"):
    a(f"v_mov_b32 v{vX}, v{vMs}")
    a("s_nop 1")
    a(f"{sw} v{vMs}, v{vX}")
    a("s_nop 0")
    a(f"v_max_f32 v{vMs}, v{vMs}, v{vX}")
a(f"ds_write_b32 v{vWs}, v{vMs}")
a("s_waitcnt lgkmcnt(0)")
a("s_barrier")
a(f"ds_read_b128 {v4(vD)}, v{vRs}")
a(f"ds_read_b128 {v4(vD+8)}, v{vRm}")
a(f"ds_read_b128 {v4(vSn)}, v{vSa}")
a("s_waitcnt lgkmcnt(1)")
for dst, b in ((vMs, vD), (vM, vD + 8)):
    a(f"v_max3_f32 v{dst}, v{b}, v{b+1}, v{b+2}")
    a(f"v_max_f32 v{dst}, v{dst}, v{b+3}")
a(f"v_min_u32 v{vM}, -2, v{vM}", "published words never equal the sentinel")
a(f"s_mov_b32 s{sCnt}, {NT}")
com("---- V phase")
lab("L_v")
for s in range(R):
    if s == 0:
        a(f"s_cmp_lg_u32 s{sCnt}, s{sTrig}")
        a("s_cbranch_scc1 L_notrig")
        a("s_barrier")
        lab("L_notrig")
        a(f"s_cmp_lg_u32 s{sCnt}, s{sF1}")
        a("s_cbranch_scc1 L_nf1")
        a(f"global_load_dword v{vCnt}, v{vDbg}, s[36:37] sc1")
        lab("L_nf1")
        a(f"s_cmp_lg_u32 s{sCnt}, s{sF2}")
        a("s_cbranch_scc1 L_nf2")
        a(f"ds_write_b32 v{vDa}, v{vCnt} offset:4", "that load is older than tiles consumed since")
        lab("L_nf2")
    a("s_waitcnt lgkmcnt(0)")
    for t in range(4): a(f"v_sub_f32 v{vS+t}, v{vSn+t}, v{vMs}")
    a(f"ds_read_b128 {v4(vSn)}, v{vSa} offset:1024")
    a(f"v_add_u32 v{vSa}, 1024, v{vSa}")
    for t in range(4): a(f"v_exp_f32 v{vS+t}, v{vS+t}")
    a(f"s_sub_u32 s{sCnt}, s{sCnt}, 1")
    for t in range(4): a(f"v_cvt_pk_bf16_f32 v{vS+t}, v{vS+t}, v{vS+t}")
    for t in range(4):
        for q in range(4): a(f"v_and_b32 v{vPd+4*t+q}, v{vS+t}, v{vMask+q}")
    for t in range(4): a(f"{MFMA} {v4(vLa)}, {v4(vPd+4*t)}, {v4(vOne)}, {v4(vLa)}")
    if s == R - 1: a(f"s_cmp_eq_u32 s{sCnt}, 0")
    for t in range(4):
        a("s_waitcnt vmcnt(7)")
        a(f"{MFMA} {v4(vO)}, {v4(vPd+4*t)}, {buf(s,t)}, {v4(vO)}")
        if s == R - 1 and t == 3: a("s_cbranch_scc1 L_vx")
        ld1(s, t)
a("s_branch L_v")
lab("L_vx")
com("---- the last wave to arrive adds the four partials (LDS executes a wave's operations in order)")
lb = vTmp; ob = vTmp + 4
a(f"ds_write_b32 v{vWm}, v{vLa} offset:{OFF_L-OFF_M}")
a("s_nop 5")
a(f"ds_write_b128 v{vWa}, {v4(vO)}")
a("s_mov_b64 exec, 1")
a(f"ds_add_rtn_u32 v{vArr}, v{vDa}, v{vI1}")
a("s_mov_b64 exec, -1")
for w in range(NW): a(f"ds_read_b128 {v4(ob+4*w)}, v{vRa} offset:{1024*w}")
a(f"ds_read_b128 {v4(lb)}, v{vRm} offset:{OFF_L-OFF_M}")
a(f"ds_read_b32 v{vCnt}, v{vDa} offset:4")
a("s_waitcnt lgkmcnt(6)")
a(f"v_readfirstlane_b32 s{sT}, v{vArr}")
a(f"s_cmp_lg_u32 s{sT}, {NW-1}")
a("s_cbranch_scc1 L_end")
for w in range(1, NW):
    a(f"s_waitcnt lgkmcnt({NW+1-w})")
    src = ob if w == 1 else vO
    a(f"v_pk_add_f32 v[{vO}:{vO+1}], v[{src}:{src+1}], v[{ob+4*w}:{ob+4*w+1}]")
    a(f"v_pk_add_f32 v[{vO+2}:{vO+3}], v[{src+2}:{src+3}], v[{ob+4*w+2}:{ob+4*w+3}]")
a("s_waitcnt lgkmcnt(0)")
a(f"v_cmp_ne_u32 vcc, s{sXc}, v{vCnt}")
for q in range(4): a(f"v_min_u32 v{vO+q}, -2, v{vO+q}")
a(f"v_add_f32 v{vLs}, v{lb}, v{lb+1}")
a(f"v_add_f32 v{vLs}, v{vLs}, v{lb+2}")
a(f"v_add_f32 v{vLs}, v{vLs}, v{lb+3}")
a(f"v_min_u32 v{vLs}, -2, v{vLs}")
a("s_cbranch_vccnz L_far")
a(f"global_store_dwordx4 v{vR1}, {v4(vO)}, s[38:39]", "records cleared, consumer shares this L2")
a(f"global_store_dwordx2 v{vR2}, v[{vM}:{vM+1}], s[38:39] offset:1024")
a("s_endpgm")
lab("L_far")
a(f"v_add_u32 v{vR1}, {AREA_B}, v{vR1}")
a(f"v_add_u32 v{vR2}, {AREA_B}, v{vR2}")
a(f"global_store_dwordx4 v{vR1}, {v4(vO)}, s[38:39] sc1")
a(f"global_store_dwordx2 v{vR2}, v[{vM}:{vM+1}], s[38:39] offset:1024 sc1")
a(f"s_lshl_b32 s{sT}, 1, s{sSp}")
a(f"v_mov_b32 v{vY}, s{sT}")
a("s_waitcnt vmcnt(0)")
a("s_mov_b64 exec, 1")
a(f"global_atomic_or v{vDbg}, v{vY}, s[36:37] offset:128 sc1")
a("s_endpgm")
com("==== wave 4: consumer of the group (split 0 only)")
lab("L_helper")
a(f"s_bfe_u32 s{sSp}, s{sWin}, 0x30012")
a("s_cbranch_scc1 L_end")
a("s_load_dwordx8 s[32:39], s[0:1], 16")
a(f"s_lshr_b32 s{sG}, s{sWin}, 21")
a(f"s_lshl_b32 s{sG512}, s{sG}, 9")
a(f"v_and_b32 v{vL}, 63, v0")
a(f"s_lshl_b32 s{sT}, s{sG}, 2")
a(f"v_mov_b32 v{vDbg}, s{sT}")
a(f"v_mov_b32 v{vDa}, {OFF_D}")
a(f"s_lshr_b32 s{sRec}, s{sWin}, 7")
a(f"v_lshl_add_u32 v{vR1}, v{vL}, 4, s{sRec}")
a(f"v_add_u32 v{vR1}, 4096, v{vR1}", "records 0-3")
a(f"v_add_u32 v{vR3}, 8192, v{vR1}", "records 4-7")
a(f"v_lshrrev_b32 v{vY}, 5, v{vL}")
a(f"v_lshl_add_u32 v{vRm}, v{vY}, 3, s{sRec}")
a(f"v_and_b32 v{vX}, 7, v{vL}")
a(f"v_lshl_add_u32 v{vR2}, v{vX}, 11, v{vRm}", "(max, sum) of record l&7, head l>>5")
for q in range(4): a(f"v_mov_b32 v{vPd+q}, -1")
a(f"v_lshlrev_b32 v{vOut}, 8, v{vY}", "out = G*512 + h*256 + (l&15)*16 + ((l>>4)&1)*8")
a(f"v_and_b32 v{vX}, 15, v{vL}")
a(f"v_lshl_add_u32 v{vOut}, v{vX}, 4, v{vOut}")
a(f"v_bfe_u32 v{vX}, v{vL}, 4, 1")
a(f"v_lshl_add_u32 v{vOut}, v{vX}, 3, v{vOut}")
a(f"v_add_u32 v{vOut}, s{sG512}, v{vOut}")
a(f"s_getreg_b32 s{sXc}, hwreg(HW_REG_XCC_ID, 0, 4)")
a(f"s_or_b32 s{sXc}, s{sXc}, 0x100")
a(f"v_mov_b32 v{vM+1}, s{sXc}")
a(f"s_mov_b32 s{sGc}, 0x100000", "bound on the number of polling rounds")
a(f"s_mov_b32 s{sDone}, 0")
a("s_waitcnt lgkmcnt(0)")
a(f"s_add_u32 s12, s38, {AREA_B}")
a("s_addc_u32 s13, s39, 0")
a("s_barrier", "K -> V transition of this workgroup")
rec = lambda s: (vR1 if s < 4 else vR3, (s % 4) * 2048 - 4096)
a(f"global_store_dwordx2 v{vR2}, v[{vPd}:{vPd+1}], s[38:39] offset:1024")
for s in range(8): a(f"global_store_dwordx4 v{rec(s)[0]}, {v4(vPd)}, s[38:39] offset:{rec(s)[1]}")
a("s_waitcnt vmcnt(0)")
a(f"global_store_dword v{vDbg}, v{vM+1}, s[36:37] sc1", "records are empty: raise the flag")
a(f"ds_write_b32 v{vDa}, v{vM+1} offset:4")
a("s_waitcnt lgkmcnt(0)")
a("s_barrier", "woken two tiles before this workgroup ends")
pO = vTmp; pML = vTmp + 32; vAcc = vTmp + 36; vMx = vTmp + 40; vG = vTmp + 41; vT2 = vTmp + 42
lab("L_poll")
a(f"global_load_dwordx2 v[{pML}:{pML+1}], v{vR2}, s[38:39] offset:1024 sc1")
for s in range(8): a(f"global_load_dwordx4 {v4(pO+4*s)}, v{rec(s)[0]}, s[38:39] offset:{rec(s)[1]} sc1")
pos = [0]; wr = {}; tr = {}
def emit(txt, w=None, rd=(), dpp=False, trans=False):
    need = 0
    for x in rd:
        if dpp and x in wr: need = max(need, 2 - (pos[0] - wr[x] - 1))
        if not trans and x in tr: need = max(need, 1 - (pos[0] - tr[x] - 1))
    if need > 0:
        a(f"s_nop {need-1}"); pos[0] += need
    a(txt)
    if w is not None:
        wr[w] = pos[0]
        if trans: tr[w] = pos[0]
        else: tr.pop(w, None)
    pos[0] += 1
wait = lambda n: emit(f"s_waitcnt vmcnt({n})")
dppop = lambda op, d, ctl: emit(f"{op} v{d}, v{d}, v{d} {ctl} {DPPM}", d, (d,), dpp=True)
def chk(s):
    b = pO + 4 * s
    emit(f"v_max3_u32 v{vMx}, v{vMx}, v{b}, v{b+1}", vMx)
    emit(f"v_max3_u32 v{vMx}, v{vMx}, v{b+2}, v{b+3}", vMx)
def acc(s):
    for q in range(4):
        emit(f"{'v_mul_f32_dpp' if s == 0 else 'v_fmac_f32_dpp'} v{vAcc+q}, v{vG}, v{pO+4*s+q} row_newbcast:{s} {DPPM}", vAcc + q, (vG, vAcc + q), dpp=True)
wait(8)
emit(f"v_max_f32_dpp v{vG}, v{pML}, v{pML} quad_perm:[1,0,3,2] {DPPM}", vG)
emit(f"v_max_u32 v{vMx}, v{pML}, v{pML+1}", vMx)
wait(7)
dppop("v_max_f32_dpp", vG, "quad_perm:[2,3,0,1]")
chk(0)
dppop("v_max_f32_dpp", vG, "row_half_mirror")
emit(f"v_sub_f32 v{vG}, v{pML}, v{vG}", vG)
emit(f"v_exp_f32 v{vG}, v{vG}", vG, trans=True)
wait(6)
emit(f"v_mul_f32 v{vT2}, v{vG}, v{pML+1}", vT2, (vG,))
chk(1); acc(0)
dppop("v_add_f32_dpp", vT2, "quad_perm:[1,0,3,2]")
acc(1); wait(5)
dppop("v_add_f32_dpp", vT2, "quad_perm:[2,3,0,1]")
acc(2); chk(2); wait(4)
dppop("v_add_f32_dpp", vT2, "row_half_mirror")
acc(3)
emit(f"v_rcp_f32 v{vT2}, v{vT2}", vT2, trans=True)
chk(3)
for s in range(4, 8):
    wait(7 - s); acc(s); chk(s)
emit(f"v_cmp_eq_u32 vcc, -1, v{vMx}")
for q in range(4): emit(f"v_mul_f32 v{vAcc+q}, v{vT2}, v{vAcc+q}", vAcc + q, (vT2,))
a(f"v_cvt_pk_bf16_f32 v{vAcc}, v{vAcc}, v{vAcc+1}")
a(f"v_cvt_pk_bf16_f32 v{vAcc+1}, v{vAcc+2}, v{vAcc+3}")
a("s_cbranch_vccnz L_again", "some word still holds the sentinel")
a(f"global_store_dwordx2 v{vOut}, v[{vAcc}:{vAcc+1}], s[34:35]")
a("s_endpgm")
lab("L_again")
a(f"s_sub_u32 s{sGc}, s{sGc}, 1")
a("s_cbranch_scc1 L_end")
a(f"s_cmp_gt_u32 s{sGc}, {0x100000-NA}")
a("s_cbranch_scc1 L_poll")
com("import the records that were announced as write-through copies")
a(f"global_load_dword v{vCnt}, v{vDbg}, s[36:37] offset:128 sc1")
a("s_waitcnt vmcnt(0)")
a(f"v_readfirstlane_b32 s{sT}, v{vCnt}")
a(f"s_andn2_b32 s{sT}, s{sT}, s{sDone}")
a(f"s_and_b32 s{sT}, s{sT}, 0xff")
a("s_cbranch_scc0 L_poll")
a(f"s_or_b32 s{sDone}, s{sDone}, s{sT}")
lab("L_imp")
a(f"s_ff1_i32_b32 s{sT2}, s{sT}")
a(f"s_bitset0_b32 s{sT}, s{sT2}")
a(f"s_lshl_b32 s{sT2}, s{sT2}, 11")
a(f"v_add_u32 v{vX}, s{sT2}, v{vR1}")
a(f"v_add_u32 v{vY}, s{sT2}, v{vRm}")
a(f"global_load_dwordx4 {v4(vPd)}, v{vX}, s[12:13] offset:-4096 sc1")
a(f"global_load_dwordx2 v[{vM}:{vM+1}], v{vY}, s[12:13] offset:1024 sc1")
a("s_waitcnt vmcnt(0)")
a(f"global_store_dwordx4 v{vX}, {v4(vPd)}, s[38:39] offset:-4096")
a(f"global_store_dwordx2 v{vY}, v[{vM}:{vM+1}], s[38:39] offset:1024")
a("s_waitcnt vmcnt(0)")
a(f"s_cmp_lg_u32 s{sT}, 0")
a("s_cbranch_scc1 L_imp")
a("s_branch L_poll")
lab("L_end")
a("s_endpgm")
out.append(f""".section .rodata,"a"
.p2align 6
.amdhsa_kernel {NAME}
  .amdhsa_next_free_vgpr {NV}
  .amdhsa_next_free_sgpr 48
  .amdhsa_accum_offset {NV}
  .amdhsa_group_segment_fixed_size 0
  .amdhsa_kernarg_size 48
  .amdhsa_user_sgpr_count 2
  .amdhsa_user_sgpr_kernarg_segment_ptr 1
  .amdhsa_system_sgpr_workgroup_id_x 1
.end_amdhsa_kernel""")
open(sys.argv[1], "w").write("\n".join(out) + "\n")
```

```python
import re, subprocess, sys
from gen import Asm, desc
main = "standalone__gqa_softmax__decode_kernel"
def build(path, mode, mult):
    subprocess.run([sys.executable, "gen14.py", "--stamps", "-o", "g.s"], check=True)
    s = open("g.s").read()
    m = re.search(r"; @launch grid=\((\d+),1,1\) block=\((\d+),1,1\) lds=(\d+)\n", s)
    hdr = "; @launch kernel=tiny_kernel grid=(1,1,1) block=(64,1,1) lds=0\n" if mode == "pre" else ""
    hdr += f"; @launch kernel={main} grid=({m.group(1)},1,1) block=({m.group(2)},1,1) lds={m.group(3)}\n"
    hdr += "; @launch kernel=spin_kernel grid=(1,1,1) block=(64,1,1) lds=0\n"
    s = s.replace(m.group(0), hdr)
    t = Asm()
    t.raw(".globl tiny_kernel\n.p2align 8\n.type tiny_kernel,@function"); t.label("tiny_kernel")
    t("s_memrealtime s[20:21]"); t("s_load_dwordx2 s[14:15], s[0:1], 40"); t("s_cmp_ge_u32 s2, 1"); t("s_cbranch_scc1 L_tend")
    t("v_mov_b32 v1, 0x8100000"); t("s_waitcnt lgkmcnt(0)"); t("v_mov_b32 v2, s20"); t("global_store_dword v1, v2, s[14:15]")
    t.label("L_tend"); t("s_endpgm")
    d = Asm()
    d.raw(".globl spin_kernel\n.p2align 8\n.type spin_kernel,@function"); d.label("spin_kernel")
    d("s_memrealtime s[30:31]")
    d("s_load_dwordx2 s[14:15], s[0:1], 40"); d("s_cmp_ge_u32 s2, 1"); d("s_cbranch_scc1 L_send")
    d("v_lshlrev_b32 v1, 7, v0"); d("v_add_u32 v1, 0x8000000, v1")
    for j in range(1, 4): d(f"v_add_u32 v{1+j}, {64*128*j}, v1")
    d("v_mov_b32 v6, 0x8100000")
    d("s_waitcnt lgkmcnt(0)")
    slot, op = (0, "min") if mode == "pre" else (9, "max")
    for j in range(4): d(f"global_load_dword v{8+j}, v{1+j}, s[14:15] offset:{8*slot}")
    d("global_load_dword v12, v6, s[14:15]")
    d("s_waitcnt vmcnt(0)")
    d(f"v_{op}_u32 v8, v8, v9"); d(f"v_{op}_u32 v10, v10, v11"); d(f"v_{op}_u32 v8, v8, v10")
    d(f"s_mov_b32 s20, {-1 if op == 'min' else 0}"); d("s_mov_b32 s22, 0")
    d.label("L_red"); d("s_nop 4"); d("v_readlane_b32 s23, v8, s22"); d("s_nop 4"); d(f"s_{op}_u32 s20, s20, s23")
    d("s_add_u32 s22, s22, 1"); d("s_cmp_lt_u32 s22, 64"); d("s_cbranch_scc1 L_red")
    d("v_readfirstlane_b32 s24, v12"); d("s_nop 4")
    d("s_sub_u32 s21, s20, s24" if mode == "pre" else "s_sub_u32 s21, s30, s20")
    d("s_min_u32 s21, s21, 20000"); d(f"s_mul_i32 s21, s21, {mult}")
    d("s_memrealtime s[24:25]"); d("s_waitcnt lgkmcnt(0)")
    d.label("L_spin"); d("s_memrealtime s[26:27]"); d("s_waitcnt lgkmcnt(0)"); d("s_sub_u32 s28, s26, s24"); d("s_cmp_lt_u32 s28, s21"); d("s_cbranch_scc1 L_spin")
    d.label("L_send"); d("s_endpgm")
    i = s.index('.section .rodata')
    s = s[:i] + (t.text() if mode == "pre" else "") + d.text() + s[i:]
    if mode == "pre": s += desc("tiny_kernel", 8, 32, 8)
    s += desc("spin_kernel", 64, 40, 64)
    open(path, "w").write(s)
build("../var/g_pre0.s", "pre", 0); build("../var/g_pre20.s", "pre", 20); build("../var/g_post0.s", "post", 0); build("../var/g_post20.s", "post", 20)
```
